```python
import torch

def _softmax(x, axis=-1):
    return torch.softmax(x, dim=axis)

def _gelu(x):
    return torch.nn.functional.gelu(x, approximate='tanh')

def _silu(x):
    return torch.nn.functional.silu(x)

def _sigmoid(x):
    return torch.sigmoid(x)

def _layernorm(x, axis=-1, eps=1e-05):
    m = x.mean(dim=axis, keepdim=True)
    v = x.var(dim=axis, keepdim=True, unbiased=False)
    return (x - m) / torch.sqrt(v + eps)

def _scatter_add(tgt, idx, src, axis=0):
    return tgt.clone().index_add_(axis, idx, src)

def _segment_sum(src, seg, n):
    out = torch.zeros((n,) + src.shape[1:], dtype=src.dtype)
    return out.index_add_(0, seg, src)

def _pad(x, pw):
    flat = tuple((v for pair in reversed(pw) for v in pair))
    return torch.nn.functional.pad(x, flat)
kernel_name = 'gated_mix__sliding_local_dilated__mixer_gmlp__prompt'

def setup_inputs():

    _w = lambda a: (lambda t: t.to(torch.bfloat16) if t.is_floating_point() else t)(torch.as_tensor(a))

    def _A_setup():
        B, S, D = (1, 2048, 1024)
        return {'x': _w((lambda *s: torch.randn(*s, dtype=torch.bfloat16) * 0.05)(B, S, D)), 'wqkv': _w((lambda *s: torch.randn(*s, dtype=torch.bfloat16) * 0.8)(D, 3 * D)), 'wo': _w((lambda *s: torch.randn(*s, dtype=torch.bfloat16) * 0.05)(D, D))}
    _A_in = _A_setup()

    def _B_setup():
        B, S, D, F = (1, 2048, 1024, 3584)
        Fh = F // 2
        return {'x': _w((lambda *s: torch.randn(*s, dtype=torch.bfloat16) * 0.05)(B, S, D)), 'w_in': _w((lambda *s: torch.randn(*s, dtype=torch.bfloat16) * 0.4)(D, 2 * Fh)), 'w_sp': _w(0.01 * (lambda *s: torch.randn(*s, dtype=torch.bfloat16) * 0.4)(S, S)), 'b_sp': _w(1.0 + 0.01 * (lambda *s: torch.randn(*s, dtype=torch.bfloat16) * 0.1)(S)), 'w_out': _w((lambda *s: torch.randn(*s, dtype=torch.bfloat16) * 0.1)(Fh, D))}
    _B_in = _B_setup()
    return {'A_x': _A_in['x'], 'A_wqkv': _A_in['wqkv'], 'A_wo': _A_in['wo'], 'B_x': _B_in['x'], 'B_w_in': _B_in['w_in'], 'B_w_sp': _B_in['w_sp'], 'B_b_sp': _B_in['b_sp'], 'B_w_out': _B_in['w_out'], 'gate_w': _w((lambda *s: torch.randn(*s, dtype=torch.bfloat16) * 0.05)(1024) * 16.0)}

def reference(A_x, A_wqkv, A_wo, B_x, B_w_in, B_w_sp, B_b_sp, B_w_out, gate_w):

    def _A_ref(x, wqkv, wo):
        B, S, D = x.shape
        H = 32
        Dh = D // H
        W, dil = (8, 2)
        qkv = (lambda x, *d: x.permute(*d))((x @ wqkv).reshape(B, S, 3, H, Dh), 2, 0, 3, 1, 4)
        q, k, v = (qkv[0], qkv[1], qkv[2])
        scale = Dh ** (-0.5)
        pos = torch.arange(S)
        off = torch.arange(W) * dil
        idx = pos[:, None] - off[None, :]
        mask = idx >= 0
        idx_c = torch.where(mask, idx, 0).reshape(-1)
        kg = k[:, :, idx_c, :].reshape(B, H, S, W, Dh)
        vg = v[:, :, idx_c, :].reshape(B, H, S, W, Dh)
        logits = torch.einsum('bhsd,bhswd->bhsw', q, kg) * scale
        logits = torch.where(mask[None, None, :, :], logits, -1000000000.0)
        attn = _softmax(logits, axis=-1)
        o = torch.einsum('bhsw,bhswd->bhsd', attn, vg)
        return (lambda x, *d: x.permute(*d))(o, 0, 2, 1, 3).reshape(B, S, D) @ wo

    def _B_ref(x, w_in, w_sp, b_sp, w_out):
        B, S, D = x.shape
        F = w_in.shape[-1]
        Fh = F // 2
        z = _gelu(torch.einsum('bsd,df->bsf', x, w_in))
        z1 = z[..., :Fh].clone()
        z2 = _layernorm(z[..., Fh:], axis=-1)
        g = torch.einsum('ts,bsf->btf', w_sp, z2) + b_sp[None, :, None]
        return torch.einsum('bsf,fd->bsd', z1 * g, w_out)
    x = A_x
    g = _sigmoid((x * gate_w).sum(-1, keepdims=True))
    a = _A_ref(x, A_wqkv, A_wo)
    b = _B_ref(x, B_w_in, B_w_sp, B_b_sp, B_w_out)
    return g * a + (1 - g) * b
```

```python
import re

TRANS = ("v_exp_f32", "v_log_f32", "v_rcp_f32", "v_rsq_f32", "v_sqrt_f32", "v_sin_f32", "v_cos_f32")
REG = re.compile(r"^(-?)(?:abs\()?([vas])(?:(\d+)|\[(\d+):(\d+)\])\)?$")


def regs_of(tok):
    tok = tok.strip()
    if tok in ("vcc", "exec"):
        return {(tok, 0)}
    if tok == "m0":
        return {("m0", 0)}
    m = REG.match(tok)
    if not m:
        return set()
    k = m.group(2)
    if m.group(3) is not None:
        return {(k, int(m.group(3)))}
    return {(k, i) for i in range(int(m.group(4)), int(m.group(5)) + 1)}


class Ins:
    def __init__(self, text):
        self.text = text
        t = text.split(";")[0].strip()
        self.op = t.split()[0]
        rest = re.sub(r"(op_sel(_hi)?|neg_lo|neg_hi):\[[0-9,]*\]", "", t[len(self.op):]).strip()
        ops = [o.strip() for o in rest.split(",")] if rest else []
        if ops:
            last = ops[-1].split()
            ops[-1] = last[0] if last else ""
            self.mods = last[1:]
        else:
            self.mods = []
        self.ops = ops
        op = self.op
        self.mfma = op.startswith("v_mfma")
        self.valu = op.startswith("v_") and not self.mfma
        self.trans = op.startswith(TRANS)
        self.perm = op.startswith("v_permlane")
        self.dpp = any(m.startswith(("row_", "quad_perm", "wave_")) for m in self.mods)
        self.vmem = op.startswith(("buffer_", "global_"))
        self.ds = op.startswith("ds_")
        self.salu = op.startswith("s_")
        self.store = self.vmem and ("store" in op or "atomic" in op)
        self.lds_dma = self.vmem and ("lds" in self.mods or "load_lds" in op)
        R = [regs_of(o) for o in ops]
        w, r = set(), set()
        self.srcC = set()
        self.sdata = set()
        if self.mfma:
            w = R[0]
            r = R[1] | R[2] | R[3]
            self.srcC = R[3]
            self.srcAB = R[1] | R[2]
            self.passes = 8 if "32x32" in op else 4
        elif self.perm:
            w = R[0] | R[1]
            r = R[0] | R[1]
        elif op.startswith("v_cmp"):
            w = R[0]
            r = set().union(*R[1:])
        elif op.startswith(("v_add_co", "v_addc_co", "v_sub_co")):
            w = R[0] | R[1]
            r = set().union(*R[2:])
        elif self.valu:
            w = R[0]
            r = set().union(*R[1:]) if len(R) > 1 else set()
            if op.startswith(("v_fmac", "v_dot2c", "v_writelane")) or self.dpp:
                r |= R[0]
        elif self.vmem:
            if op.startswith(("buffer_inv", "buffer_wbl2")):
                pass
            elif self.lds_dma:
                r = set().union(*R) | {("m0", 0)}
            elif self.store:
                r = set().union(*R)
                if op.startswith("buffer_"):
                    self.sdata = R[0]
                elif "atomic" in op and "sc0" in self.mods:
                    w = R[0]
                    r = set().union(*R[1:])
                else:
                    self.sdata = R[1]
            else:
                w = R[0]
                r = set().union(*R[1:])
        elif self.ds:
            if op.startswith(("ds_write", "ds_add")):
                r = set().union(*R)
            else:
                w = R[0]
                r = set().union(*R[1:])
        elif self.salu:
            if op.startswith(("s_cmp", "s_cbranch", "s_waitcnt", "s_barrier", "s_nop", "s_branch", "s_endpgm", "s_sleep", "s_setprio")):
                r = set().union(*R) if R else set()
            else:
                w = R[0] if R else set()
                r = set().union(*R[1:]) if len(R) > 1 else set()
                if "saveexec" in op:
                    w |= {("exec", 0)}
        self.w, self.r = w, r
        self.wide = self.store and ("x4" in op or "x3" in op)
        self.states = 1
        if op == "s_nop":
            self.states = int(ops[0]) + 1


def sg(s):
    return {x for x in s if x[0] in ("s", "vcc")}


def need(p, c):
    n = 0
    if p.mfma:
        ps = p.passes
        if c.mfma:
            if p.w & c.srcAB:
                n = max(n, ps + 4)
            if p.w & c.srcC and not (p.w == c.srcC and ps == c.passes):
                n = max(n, ps + 2)
            if p.w & c.w and not (p.w & c.srcC):
                n = max(n, ps + 2)
        elif (c.valu or c.vmem or c.ds) and (p.w & (c.r | c.w)):
            n = max(n, ps + 4)
        if c.valu and (p.srcC & c.w):
            n = max(n, ps - 1)
    if p.valu:
        if c.mfma and (p.w & c.r):
            n = max(n, 2)
        if (c.perm or c.dpp) and (p.w & c.r):
            n = max(n, 2)
        if c.op.startswith(("v_readfirstlane", "v_readlane")) and (p.w & c.r):
            n = max(n, 1)
        if p.trans and c.valu and not c.trans and (p.w & c.r):
            n = max(n, 1)
        s = sg(p.w)
        if s:
            if c.vmem and (s & c.r):
                n = max(n, 5)
            if c.valu and (s & c.r):
                n = max(n, 4 if c.op.startswith(("v_readlane", "v_writelane")) else 2)
            if c.salu and (s & c.r):
                n = max(n, 2)
        if ("exec", 0) in p.w:
            n = max(n, 5)
    if p.salu and ("m0", 0) in p.w and c.lds_dma:
        n = max(n, 1)
    if p.wide and (p.sdata & c.w):
        n = max(n, 2)
    return n


class Asm:
    def __init__(self):
        self.out = []
        self.hist = []
        self.vm = []
        self.nlab = 0

    def raw(self, s):
        self.out.append(s)

    def label(self, name):
        self.out.append(name + ":")

    def newlabel(self, base):
        self.nlab += 1
        return f"{base}_{self.nlab}"

    def one(self, text, tag=None):
        c = Ins(text)
        dist, pad = 0, 0
        for p in reversed(self.hist):
            pad = max(pad, need(p, c) - dist)
            dist += p.states
            if dist >= 14:
                break
        while pad > 0:
            k = min(pad, 16)
            nop = Ins(f"s_nop {k - 1}")
            self.hist.append(nop)
            self.out.append("    " + nop.text)
            pad -= k
        self.hist.append(c)
        self.hist = self.hist[-24:]
        self.out.append("    " + text)
        if c.vmem:
            self.vm.append(tag)

    def __call__(self, s, tag=None):
        for l in s.split("\n"):
            l = l.strip()
            if not l:
                continue
            if l.endswith(":"):
                self.label(l[:-1])
            else:
                self.one(l, tag)

    def emit(self, items):
        for it in items:
            if isinstance(it, tuple):
                self(it[0], it[1])
            else:
                self(it)

    def vm_left(self, tags):
        for n, t in enumerate(reversed(self.vm)):
            if t in tags:
                return n
        return None

    def wait_vm(self, tags, extra=""):
        n = self.vm_left(tags)
        if n is None:
            if extra:
                self("s_waitcnt " + extra)
            return
        self(f"s_waitcnt vmcnt({min(n, 63)}) {extra}".strip())

    def fence(self, states=14):
        self(f"s_nop {min(states, 16) - 1}")
        self.hist = []

    def text(self):
        return "\n".join(self.out) + "\n"


def spread(main, groups, first=0, last=None):
    n = len(main)
    last = n - 1 if last is None else min(last, n - 1)
    gaps = [[] for _ in range(n)]
    for j, g in enumerate(groups):
        gaps[first + (j * (last - first + 1)) // len(groups)].extend(g)
    out = []
    for m, g in zip(main, gaps):
        out.append(m)
        out.extend(g)
    return out


def spread2(main, specs):
    n = len(main)
    gaps = [[] for _ in range(n)]
    for groups, first, last in specs:
        last = min(last, n - 1)
        for j, g in enumerate(groups):
            gaps[first + (j * (last - first + 1)) // len(groups)].extend(g)
    out = []
    for m, g in zip(main, gaps):
        out.append(m)
        out.extend(g)
    return out


def head(name):
    return f".text\n.globl {name}\n.p2align 8\n.type {name},@function\n{name}:\n"


def desc(name, vgpr, accum, sgpr=102):
    return f""".section .rodata,"a"
.p2align 6
.amdhsa_kernel {name}
  .amdhsa_next_free_vgpr {vgpr}
  .amdhsa_next_free_sgpr {sgpr}
  .amdhsa_accum_offset {accum}
  .amdhsa_group_segment_fixed_size 0
  .amdhsa_kernarg_size 96
  .amdhsa_user_sgpr_count 2
  .amdhsa_user_sgpr_kernarg_segment_ptr 1
  .amdhsa_system_sgpr_workgroup_id_x 1
  .amdhsa_float_denorm_mode_32 3
.end_amdhsa_kernel
"""
```

```python
WS_Z2N = 0x0000000
WS_Z1  = 0x0700000
WS_O   = 0x0E00000
WS_Y   = 0x1200000
WS_G   = 0x1900000
WS_ST  = 0x1910000
WS_SIZE = 0x1A00000
ARG = dict(x=0, wqkv=8, wo=16, w_in=32, w_sp=40, b_sp=48, w_out=56, gate=64, out=72, dbg=80, ws=88)

def srd(a, d, base, size):
    a(f"s_mov_b32 s{d}, s{base}\ns_mov_b32 s{d+1}, s{base+1}\ns_mov_b32 s{d+2}, {hex(size)}\ns_mov_b32 s{d+3}, 0x20000")

def srd_biased(a, d, base, size, bias=4096):
    a(f"s_sub_u32 s{d}, s{base}, {bias}\ns_subb_u32 s{d+1}, s{base+1}, 0\ns_mov_b32 s{d+2}, {hex(size + bias)}\ns_mov_b32 s{d+3}, 0x20000")

def vr(b, n=4, k="v"):
    return f"{k}[{b}:{b + n - 1}]"

def mfma(d, A, B, C=None, dk="v", k16=False):
    op = "v_mfma_f32_16x16x16_bf16" if k16 else "v_mfma_f32_16x16x32_bf16"
    D = vr(d, 4, dk)
    return f"{op} {D}, {A}, {B}, {D if C is None else C}"

GELU_C0 = -2.302208198144325
GELU_C1 = GELU_C0 * 0.044715
import struct
def f2u(x):
    return "0x%08x" % struct.unpack("<I", struct.pack("<f", x))[0]

def gelu_pairs(pairs, tmps, sC1, vC0, sOne, stats=None):
    out = []
    nb = len(tmps)
    for b0 in range(0, len(pairs), nb):
        ps = pairs[b0:b0 + nb]
        P = [vr(p, 2) for p in ps]
        T = [vr(t, 2) for t in tmps[:len(ps)]]
        out += [f"v_pk_mul_f32 {t}, {p}, {p}" for p, t in zip(P, T)]
        out += [f"v_pk_fma_f32 {t}, {t}, {vr(sC1, 2, 's')}, {vr(vC0, 2)}" for t in T]
        out += [f"v_pk_mul_f32 {t}, {t}, {p}" for p, t in zip(P, T)]
        for t in tmps[:len(ps)]:
            out += [f"v_exp_f32 v{t}, v{t}", f"v_exp_f32 v{t+1}, v{t+1}"]
        out += [f"v_pk_add_f32 {t}, {t}, {vr(sOne, 2, 's')}" for t in T]
        for t in tmps[:len(ps)]:
            out += [f"v_rcp_f32 v{t}, v{t}", f"v_rcp_f32 v{t+1}, v{t+1}"]
        out += [f"v_pk_mul_f32 {p}, {p}, {t}" for p, t in zip(P, T)]
        if stats:
            for p, (s, q, first) in zip(P, stats[b0:b0 + nb]):
                if first:
                    out.append(f"v_pk_mul_f32 {vr(q, 2)}, {p}, {p}")
                    out.append(f"v_pk_mul_f32 {vr(s, 2)}, {p}, {vr(sOne, 2, 's')}")
                else:
                    out.append(f"v_pk_fma_f32 {vr(q, 2)}, {p}, {p}, {vr(q, 2)}")
                    out.append(f"v_pk_add_f32 {vr(s, 2)}, {vr(s, 2)}, {p}")
    return out

def code_prefetch(a, start, end, nbytes_max, sbase, vtmp, vdst, slice_sgpr, nslices):
    per = -(-nbytes_max // nslices // 128) * 128
    assert per <= 64 * 128
    lab = a.newlabel("L_pc")
    a(f"s_getpc_b64 {vr(sbase, 2, 's')}")
    a.label(lab)
    a(f"s_add_u32 s{sbase}, s{sbase}, {start}-{lab}\ns_addc_u32 s{sbase+1}, s{sbase+1}, 0")
    a(f"v_lshlrev_b32 v{vtmp}, 7, v0\nv_min_u32 v{vtmp}, {per - 128}, v{vtmp}")
    a(f"s_mul_i32 s{sbase+2}, s{slice_sgpr}, {per}\nv_add_u32 v{vtmp}, s{sbase+2}, v{vtmp}")
    a(f"v_min_u32 v{vtmp}, {end}-{start}-4, v{vtmp}")
    a(f"global_load_dword v{vdst}, v{vtmp}, {vr(sbase, 2, 's')}", tag="pf")
```

```python
from asm import *
from common import *

XS_Q, XS_Z = 34816, 32768
WS_Q, WS_Z = 14336, 12288
LDS_K1 = 3 * XS_Q + 4 * WS_Q
S_WAVE = 3
SRD_X, SRD_W, SRD_W2, SRD_WS = 8, 12, 16, 20
S_XS, S_WOFF, S_W2OFF, S_XD, S_XR, S_M0X, S_M0W = 24, 25, 26, 27, 28, 29, 30
S_LO = 32
S_CNT, S_RB, S_IDX, S_M0H = 34, 35, 44, 45
S_DBG, S_WSP = 40, 42
S_T = 46
S_C1, S_ONE = 60, 62
GATE_A = 160


def common_prologue(a, cfg):
    a("s_cmp_ge_u32 s2, 256\ns_cbranch_scc1 L_k1_end")
    a("s_load_dwordx4 s[4:7], s[0:1], 0\ns_load_dwordx2 s[36:37], s[0:1], 32\ns_load_dwordx2 s[38:39], s[0:1], 64\ns_load_dwordx4 s[40:43], s[0:1], 80")
    if cfg.get("stamp"):
        a("s_memrealtime s[70:71]\ns_memtime s[72:73]")
    a("v_lshrrev_b32 v1, 6, v0\nv_and_b32 v0, 63, v0\nv_readfirstlane_b32 s3, v1")
    a(f"s_and_b32 s46, s2, 7\ns_lshr_b32 s47, s2, 3\ns_and_b32 s{S_RB}, s47, 7\ns_lshr_b32 s47, s47, 3")
    a(f"s_and_b32 s48, s47, 1\ns_lshl_b32 s46, s46, 1\ns_add_u32 s{S_IDX}, s46, s48")
    a(f"s_mov_b32 s{S_LO}, -1\ns_mov_b32 s{S_LO+1}, 0")
    a("v_lshrrev_b32 v20, 3, v0\nv_and_b32 v21, 7, v0\nv_lshrrev_b32 v22, 4, v0")
    a(f"s_lshl_b32 s48, s{S_RB}, 8\ns_lshl_b32 s49, s3, 6\ns_add_u32 s48, s48, s49\nv_add_u32 v23, s48, v20\nv_lshlrev_b32 v23, 11, v23")
    a("v_xor_b32 v24, v21, v22\nv_xor_b32 v25, 4, v24\nv_lshl_add_u32 v24, v24, 4, v23\nv_lshl_add_u32 v25, v25, 4, v23")
    for j in range(8):
        a(f"v_add_u32 v{2 + j}, {j * 16384 - (j % 4) * 1024}, v{24 + (j & 1)}")
    a("s_lshl_b32 s49, s3, 3\nv_add_u32 v23, s49, v20")
    a("s_and_b32 s50, s3, 1\ns_lshl_b32 s50, s50, 1\nv_and_b32 v24, 1, v22\nv_or_b32 v24, s50, v24")
    a("v_lshrrev_b32 v25, 1, v21\nv_xor_b32 v25, v25, v24\nv_lshlrev_b32 v25, 5, v25\nv_and_b32 v26, 1, v0\nv_lshl_add_u32 v25, v26, 4, v25")
    a(f"s_mov_b32 s{S_XS}, 0\ns_mov_b32 s{S_WOFF}, 0\ns_mov_b32 s{S_W2OFF}, 0\ns_mov_b32 s{S_XD}, 0\ns_mov_b32 s{S_XR}, 0")
    a("s_cmp_ge_u32 s47, 2\ns_cbranch_scc1 L_k1_z")


def read_bases(a, q):
    XS = XS_Q if q else XS_Z
    WB = 3 * XS
    blk = 3584 if q else 3072
    a("v_and_b32 v20, 15, v0\nv_lshrrev_b32 v21, 4, v0\nv_lshrrev_b32 v22, 1, v20\nv_xor_b32 v22, v22, v21")
    a("v_lshlrev_b32 v22, 4, v22\nv_lshl_add_u32 v22, v20, 7, v22")
    if q:
        a("s_lshr_b32 s49, s3, 1\ns_lshl_b32 s49, s49, 14")
    else:
        a("s_lshl_b32 s49, s3, 13")
    a("v_add_u32 v14, s49, v22\nv_xor_b32 v15, 64, v14\nv_mov_b32 v16, v14\nv_mov_b32 v17, v15")
    a("v_lshrrev_b32 v20, 2, v0\nv_and_b32 v20, 3, v20\nv_and_b32 v22, 3, v0")
    a("v_lshrrev_b32 v23, 1, v20\nv_and_b32 v24, 1, v21\nv_lshl_or_b32 v23, v24, 1, v23")
    a(f"v_mul_u32_u24 v25, {blk}, v21\nv_lshl_add_u32 v26, v20, 7, v25\nv_lshl_add_u32 v26, v22, 3, v26\nv_add_u32 v26, {WB}, v26")
    if q:
        a("s_and_b32 s49, s3, 1\ns_lshl_b32 s50, s49, 1\nv_xor_b32 v30, s50, v23\nv_lshl_add_u32 v18, v30, 5, v26\nv_xor_b32 v30, 1, v30\nv_lshl_add_u32 v19, v30, 5, v26")
        a(f"v_lshl_add_u32 v26, v20, 6, v25\nv_lshl_add_u32 v26, v22, 3, v26\nv_add_u32 v26, {WB + 3072}, v26")
        a("v_xor_b32 v30, s49, v24\nv_lshl_add_u32 v28, v30, 5, v26")
    else:
        for j, r in enumerate((18, 19, 28, 29)):
            a(f"v_xor_b32 v30, {j}, v23\nv_lshl_add_u32 v{r}, v30, 5, v26")


def gate_loads(a):
    a("s_lshl_b32 s49, s2, 3\ns_lshl_b32 s50, s3, 1\ns_add_u32 s49, s49, s50\ns_lshl_b32 s49, s49, 11\nv_lshlrev_b32 v20, 4, v0")
    a("s_add_u32 s50, s49, 2048")
    for t, so in ((0, "s49"), (1, "s50")):
        for h in range(2):
            r = GATE_A + 8 * t + 4 * h
            a(f"buffer_load_dwordx4 {vr(r, 4, 'a')}, v20, {vr(SRD_X, 4, 's')}, {so} offen offset:{1024 * h}", tag="gate")
    for h in range(2):
        r = GATE_A + 16 + 4 * h
        a(f"global_load_dwordx4 {vr(r, 4, 'a')}, v20, s[38:39] offset:{1024 * h}", tag="gate")


def gate_finish(a, T):
    for i in range(24):
        a(f"v_accvgpr_read_b32 v{T + i}, a{GATE_A + i}")
    s0, s1 = T + 24, T + 25
    a(f"v_mov_b32 v{s0}, 0\nv_mov_b32 v{s1}, 0")
    for i in range(8):
        a(f"v_dot2c_f32_bf16 v{s0}, v{T + i}, v{T + 16 + i}\nv_dot2c_f32_bf16 v{s1}, v{T + 8 + i}, v{T + 16 + i}")
    a("s_nop 2")
    t = T + 26
    a(f"v_permlane32_swap_b32 v{s0}, v{s1}\nv_add_f32 v{s0}, v{s0}, v{s1}\nv_mov_b32 v{t}, v{s0}")
    a(f"v_permlane16_swap_b32 v{s0}, v{t}\nv_add_f32 v{s0}, v{s0}, v{t}")
    for sh in (8, 4, 2, 1):
        a(f"v_add_f32_dpp v{s0}, v{s0}, v{s0} row_ror:{sh} row_mask:0xf bank_mask:0xf")
    a(f"v_mul_f32 v{s0}, {f2u(-1.4426950408889634)}, v{s0}\nv_exp_f32 v{s0}, v{s0}\nv_add_f32 v{s0}, 1.0, v{s0}\nv_rcp_f32 v{s0}, v{s0}")
    a(f"s_lshl_b32 s49, s2, 5\ns_lshl_b32 s50, s3, 3\ns_add_u32 s49, s49, s50\ns_add_u32 s49, s49, {WS_G}")
    a(f"v_lshrrev_b32 v{t}, 3, v0\nv_and_b32 v{s1}, 31, v0\nv_cmp_eq_u32 vcc, 0, v{s1}")
    a("s_and_saveexec_b64 s[50:51], vcc")
    a(f"buffer_store_dword v{s0}, v{t}, {vr(SRD_WS, 4, 's')}, s49 offen")
    a("s_mov_b64 exec, s[50:51]")


class Loop:
    def __init__(self, a, q, cfg):
        self.a, self.q, self.cfg = a, q, cfg
        self.XS = XS_Q if q else XS_Z
        self.WS = WS_Q if q else WS_Z
        self.WP = 6144 if q else 7168
        self.nx, self.nw = (9, 7) if q else (4, 12)
        self.ACC = 48 if q else 64

    def xf(self, p, u): return 64 * p + 4 * u
    def wf(self, p, n): return 64 * p + 4 * self.nx + 4 * n

    def acc(self, n, u):
        if not self.q:
            return self.ACC + 4 * (4 * n + u), "v"
        if n < 2:
            return self.ACC + 8 * (u - 1) + 4 * n, "v"
        if n < 4:
            return self.ACC + 64 + 8 * u + 4 * (n - 2), "v"
        if n < 6:
            return self.ACC + 136 + 36 * (n - 4) + 4 * u, "v"
        return 128 + 4 * (u - 1), "a"

    def dma_w(self, slot):
        ax = self.cfg.get("auxw", "")
        g = [[f"s_add_u32 m0, s{S_M0W}, {slot * self.WS}", f"buffer_load_dwordx4 v10, {vr(SRD_W, 4, 's')}, s{S_WOFF} offen {ax} lds"]]
        g.append([f"buffer_load_dwordx4 v11, {vr(SRD_W, 4, 's')}, s{S_WOFF} offen offset:1024 {ax} lds"])
        g.append([f"buffer_load_dwordx4 v12, {vr(SRD_W, 4, 's')}, s{S_WOFF} offen offset:2048 {ax} lds", f"s_add_u32 s{S_WOFF}, s{S_WOFF}, {32 * self.WP}"])
        if self.q:
            g.append([f"s_mov_b64 exec, {vr(S_LO, 2, 's')}", f"buffer_load_dwordx4 v13, {vr(SRD_W2, 4, 's')}, s{S_W2OFF} offen offset:3072 {ax} lds",
                      "s_mov_b64 exec, -1", f"s_add_u32 s{S_W2OFF}, s{S_W2OFF}, {32 * 7168}"])
        return g

    def dma_x(self, h):
        ax = self.cfg.get("auxx", "")
        g = []
        for j in range(4):
            pre = []
            if j == 0:
                pre = [f"s_add_u32 m0, s{S_M0X}, s{S_XD}"] + ([f"s_add_u32 m0, m0, 4096"] if h else [])
            g.append(pre + [f"buffer_load_dwordx4 v{2 + 4 * h + j}, {vr(SRD_X, 4, 's')}, s{S_XS} offen offset:{j * 1024} {ax} lds"])
        if h == 1:
            if self.q:
                g.append([f"s_add_u32 m0, s{S_M0H}, s{S_XD}", f"s_mov_b64 exec, {vr(S_LO, 2, 's')}",
                          f"buffer_load_dwordx4 v1, {vr(SRD_X, 4, 's')}, s{S_XS} offen {ax} lds", "s_mov_b64 exec, -1"])
            g[-1] += [f"s_add_u32 s{S_XS}, s{S_XS}, 128", f"s_add_u32 s{S_XD}, s{S_XD}, {self.XS}",
                      f"s_cmp_eq_u32 s{S_XD}, {3 * self.XS}", f"s_cselect_b32 s{S_XD}, 0, s{S_XD}"]
        return g

    def n_w(self): return 4 if self.q else 3
    def n_x(self, h): return 4 + (1 if (h and self.q) else 0)

    def reads(self, i):
        p = i & 1
        g = [[f"ds_read_b128 {vr(self.xf(p, u), 4, 'a')}, v{16 + p} offset:{u * 2048}"] for u in range(self.nx)]
        off = (i % 4) * self.WS
        for n in range(self.nw):
            r = self.wf(p, n)
            st = 512
            if self.q:
                v, o = (18 + (n & 1), off + (n >> 1) * 1024) if n < 6 else (28, off)
                if n == 6: st = 256
            else:
                v, o = (18, 19, 28, 29)[n % 4], off + (n // 4) * 1024
            g.append([f"ds_read_b64_tr_b16 {vr(r, 2, 'a')}, v{v} offset:{o}"])
            g.append([f"ds_read_b64_tr_b16 {vr(r + 2, 2, 'a')}, v{v} offset:{o + st}"])
        return g

    def mfmas(self, i):
        p = i & 1
        out = []
        if self.q:
            for u in range(9):
                ns = [2, 3, 4, 5] if u == 0 else list(range(7))
                if u & 1: ns = ns[::-1]
                for n in ns:
                    d, k = self.acc(n, u)
                    W, X = vr(self.wf(p, n), 4, "a"), vr(self.xf(p, u), 4, "a")
                    out.append(mfma(d, X, W, dk=k) if n in (4, 5) else mfma(d, W, X, dk=k))
        else:
            for n in range(12):
                for u in (range(4) if n % 2 == 0 else range(3, -1, -1)):
                    d, k = self.acc(n, u)
                    out.append(mfma(d, vr(self.wf(p, n), 4, "a"), vr(self.xf(p, u), 4, "a")))
        return out

    def step(self, i, dw, dx, wait, last=False):
        a = self.a
        a(f"s_waitcnt vmcnt({wait}) lgkmcnt(0)\ns_barrier")
        m = self.mfmas(i)
        n = len(m)
        rd = [] if last else self.reads(i + 1)
        if rd and (i & 1):
            XS = self.XS
            rd = [[f"s_add_u32 s{S_XR}, s{S_XR}, {XS}", f"s_cmp_eq_u32 s{S_XR}, {3 * XS}", f"s_cselect_b32 s{S_XR}, 0, s{S_XR}"],
                  [f"v_add_u32 v16, s{S_XR}, v14", f"v_add_u32 v17, s{S_XR}, v15"]] + rd
        dm = (self.dma_w(i % 4) if dw else []) + (self.dma_x(1 - (i & 1)) if dx else [])
        specs = []
        if rd: specs.append((rd, 0, int(n * 0.8)))
        if dm: specs.append((dm, 0, int(n * 0.9)))
        a.emit(spread2(m, specs))

    def run(self, zero_acc):
        a = self.a
        nd = lambda t: (self.n_w() if t <= 27 else 0) + (self.n_x(1 - (t & 1)) if t <= 26 else 0)
        for g in self.dma_w(1) + self.dma_x(0) + self.dma_w(2) + self.dma_x(1) + self.dma_w(3) + self.dma_x(0):
            a.emit(g)
        zero_acc()
        a(f"s_waitcnt vmcnt({nd(-3) + nd(-2) + nd(-1)})\ns_barrier")
        stamp(a, self.cfg, 0)
        for g in self.reads(0): a.emit(g)
        lab = "L_k1_loop_q" if self.q else "L_k1_loop_z"
        a(f"s_mov_b32 s{S_CNT}, 0")
        a.fence(2)
        a.label(lab)
        for i in range(4):
            self.step(i, True, True, nd(i - 1) + nd(i - 2))
        a(f"s_add_u32 s{S_CNT}, s{S_CNT}, 1\ns_cmp_lt_u32 s{S_CNT}, 6\ns_cbranch_scc1 {lab}")
        for i in range(24, 32):
            self.step(i, i <= 27, i <= 26, nd(i - 1) + nd(i - 2), last=(i == 31))


def stamp(a, cfg, k):
    if cfg.get("stamp"):
        a(f"s_memtime s[{74 + 2 * k}:{75 + 2 * k}]")


def write_stamps(a, cfg, n, slot, wsreg=S_WSP):
    if not cfg.get("stamp"):
        return
    a("s_memtime s[90:91]\ns_memrealtime s[92:93]\ns_waitcnt lgkmcnt(0)")
    vals = [70, 92] + [74 + 2 * k for k in range(n)] + [90]
    for j, s in enumerate(vals):
        if j >= 2: a(f"s_sub_u32 s{s}, s{s}, s72")
        a(f"v_mov_b32 v{8 + j}, s{s}")
    a(f"s_lshl_b32 s46, s2, 2\ns_add_u32 s46, s46, s3\ns_lshl_b32 s46, s46, 5\ns_add_u32 s46, s46, {0x1B00000 + slot * 0x10000}\nv_mov_b32 v1, s46")
    a("v_cmp_eq_u32 vcc, 0, v0\ns_and_saveexec_b64 s[50:51], vcc")
    a(f"global_store_dwordx4 v1, v[8:11], {vr(wsreg, 2, 's')}\nglobal_store_dwordx4 v1, v[12:15], {vr(wsreg, 2, 's')} offset:16")
    a("s_mov_b64 exec, s[50:51]")


def gen_q(a, cfg):
    L = Loop(a, True, cfg)
    a(f"v_mul_u32_u24 v23, 6144, v23\nv_add_u32 v25, v25, v23\ns_lshl_b32 s48, s{S_IDX}, 7\nv_add_u32 v25, s48, v25")
    for c in range(3):
        a(f"v_add_u32 v{10 + c}, {c * 2048 - c * 1024}, v25")
    a("v_lshrrev_b32 v23, 2, v0\nv_and_b32 v23, 7, v23\nv_add_u32 v23, s49, v23\nv_mul_u32_u24 v23, 7168, v23")
    a("s_and_b32 s50, s3, 1\nv_lshrrev_b32 v24, 1, v0\nv_and_b32 v24, 1, v24\nv_xor_b32 v24, s50, v24\nv_lshlrev_b32 v24, 5, v24\nv_lshl_add_u32 v24, v26, 4, v24")
    a(f"s_lshl_b32 s48, s{S_IDX}, 6\ns_add_u32 s48, s48, {2560 + 4096 - 3072}\nv_add_u32 v24, v24, v23\nv_add_u32 v13, s48, v24")
    a(f"s_lshl_b32 s48, s{S_RB}, 8\ns_max_u32 s48, s48, 16\ns_sub_u32 s48, s48, 16\ns_lshl_b32 s50, s3, 2\ns_add_u32 s48, s48, s50")
    a("v_add_u32 v23, s48, v20\nv_lshlrev_b32 v23, 11, v23\ns_lshl_b32 s50, s3, 1\nv_add_u32 v24, s50, v22\nv_and_b32 v24, 7, v24\nv_xor_b32 v24, v24, v21\nv_lshl_add_u32 v1, v24, 4, v23")
    a(f"s_lshl_b32 s{S_M0X}, s3, 13\ns_add_u32 s{S_M0X}, s{S_M0X}, 2048\ns_lshl_b32 s{S_M0H}, s3, 9")
    a(f"s_mul_i32 s{S_M0W}, s3, 3584\ns_add_u32 s{S_M0W}, s{S_M0W}, {3 * XS_Q}")
    a("s_waitcnt lgkmcnt(0)")
    srd(a, SRD_X, 4, 0x400000)
    srd(a, SRD_W, 6, 0x600000)
    srd_biased(a, SRD_W2, 36, 0x700000)
    for g in L.dma_x(0) + L.dma_x(1) + L.dma_w(0): a.emit(g)
    srd(a, SRD_WS, S_WSP, WS_SIZE)
    read_bases(a, True)
    gate_loads(a)
    def zero():
        for i in range(208): a(f"v_mov_b32 v{L.ACC + i}, 0")
        for i in range(32): a(f"v_accvgpr_write_b32 a{128 + i}, 0")
    if cfg.get("codepf"): cfg["codepf"](a)
    L.run(zero)
    stamp(a, cfg, 1)
    gate_finish(a, 2)
    Q = lambda u: L.ACC + 8 * (u - 1)
    K = lambda u: L.ACC + 64 + 8 * u
    V = lambda n, u: L.ACC + 136 + 36 * n + 2 * u
    P = lambda u: Q(u) + 4
    C = lambda u: K(u) + 4
    U = range(1, 9)
    a("v_and_b32 v2, 15, v0\nv_lshrrev_b32 v3, 4, v0\nv_and_b32 v4, 1, v0\nv_lshl_add_u32 v5, v3, 2, v4\nv_add_u32 v6, 2, v5")
    a("v_cmp_eq_u32 s[50:51], 1, v4\nv_cmp_le_u32 s[52:53], v5, v2\nv_cmp_le_u32 s[54:55], v6, v2")
    a("v_mov_b32 v7, 0x0c0c0100\nv_mov_b32 v8, 0x01000c0c\nv_mov_b32 v9, 0x0c0c0302\nv_mov_b32 v10, 0x03020c0c\nv_mov_b32 v11, 0x0c0c0c0c")
    a("v_cndmask_b32 v7, v7, v8, s[50:51]\nv_cndmask_b32 v9, v9, v10, s[50:51]")
    a("v_cndmask_b32 v12, v7, v11, s[52:53]\nv_cndmask_b32 v13, v9, v11, s[54:55]\nv_cndmask_b32 v14, v11, v7, s[52:53]\nv_cndmask_b32 v15, v11, v9, s[54:55]")
    a(f"s_lshr_b32 s46, s3, 1\ns_or_b32 s46, s46, s{S_RB}\ns_cmp_eq_u32 s46, 0\ns_cselect_b64 s[56:57], -1, 0\nv_mov_b32 v16, 0xff800000")
    for base in [K(u) for u in range(9)] + [Q(u) for u in U]:
        for j in range(4): a(f"v_cvt_pk_bf16_f32 v{base + j}, v{base + 2 * j}, v{base + 2 * j + 1}")
    for u in U:
        a(mfma(P(u), vr(K(u - 1)), vr(Q(u)), "0"))
        a(mfma(C(u), vr(K(u)), vr(Q(u)), "0"))
    for n in range(2):
        b = L.ACC + 136 + 36 * n
        for j in range(18): a(f"v_cvt_pk_bf16_f32 v{b + j}, v{b + 2 * j}, v{b + 2 * j + 1}")
    sc = f2u(32 ** -0.5 * 1.4426950408889634)
    a(f"s_mov_b32 s46, {sc}")
    def each(fmt):
        for u in U:
            a(fmt.format(P0=P(u), P1=P(u) + 1, P2=P(u) + 2, P3=P(u) + 3, C0=C(u), C1=C(u) + 1, C2=C(u) + 2, C3=C(u) + 3))
    each("v_cndmask_b32 v{P0}, v{P0}, v{P1}, s[50:51]\nv_cndmask_b32 v{P2}, v{P2}, v{P3}, s[50:51]")
    a(f"v_cndmask_b32 v{P(1)}, v{P(1)}, v16, s[56:57]\nv_cndmask_b32 v{P(1) + 2}, v{P(1) + 2}, v16, s[56:57]")
    each("v_cndmask_b32 v{C0}, v{C0}, v{C1}, s[50:51]\nv_cndmask_b32 v{C2}, v{C2}, v{C3}, s[50:51]")
    each("v_cndmask_b32 v{P0}, v{P0}, v{C0}, s[52:53]\nv_cndmask_b32 v{P2}, v{P2}, v{C2}, s[54:55]")
    each("v_max_f32 v{P1}, v{P0}, v{P2}")
    def xreduce(op):
        each("v_mov_b32 v{P3}, v{P1}")
        each("v_permlane32_swap_b32 v{P1}, v{P3}")
        each(op + " v{P1}, v{P1}, v{P3}")
        each("v_mov_b32 v{P3}, v{P1}")
        each("v_permlane16_swap_b32 v{P1}, v{P3}")
        each(op + " v{P1}, v{P1}, v{P3}")
    xreduce("v_max_f32")
    each("v_sub_f32 v{P0}, v{P0}, v{P1}\nv_sub_f32 v{P2}, v{P2}, v{P1}")
    each("v_mul_f32 v{P0}, s46, v{P0}\nv_mul_f32 v{P2}, s46, v{P2}")
    each("v_exp_f32 v{P0}, v{P0}\nv_exp_f32 v{P2}, v{P2}")
    each("v_add_f32 v{P1}, v{P0}, v{P2}")
    xreduce("v_add_f32")
    each("v_rcp_f32 v{P1}, v{P1}")
    each("v_mul_f32 v{P0}, v{P0}, v{P1}\nv_mul_f32 v{P2}, v{P2}, v{P1}")
    each("v_cvt_pk_bf16_f32 v{C1}, v{P0}, v{P2}")
    each("v_perm_b32 v{P0}, v{C1}, v{C1}, v12\nv_perm_b32 v{P1}, v{C1}, v{C1}, v13\nv_perm_b32 v{P2}, v{C1}, v{C1}, v14\nv_perm_b32 v{P3}, v{C1}, v{C1}, v15")
    for u in U:
        a(mfma(C(u), vr(V(0, u - 1)), vr(P(u)), "0"))
        a(mfma(Q(u), vr(V(1, u - 1)), vr(P(u)), "0"))
    a("v_lshlrev_b32 v17, 4, v0")
    a(f"s_lshl_b32 s46, s{S_RB}, 3\ns_lshr_b32 s47, s3, 1\ns_lshl_b32 s47, s47, 2\ns_add_u32 s46, s46, s47\ns_mul_i32 s46, s46, {112 * 1024}")
    a(f"s_lshl_b32 s47, s{S_IDX}, 1\ns_and_b32 s48, s3, 1\ns_add_u32 s47, s47, s48\ns_add_u32 s49, s47, 80\ns_lshl_b32 s49, s49, 10\ns_add_u32 s46, s46, s49\ns_add_u32 s46, s46, {WS_Z1}")
    for tp in range(4):
        T = 18 + 8 * (tp % 3)
        for j in range(8): a(f"v_accvgpr_read_b32 v{T + j}, a{128 + 8 * tp + j}")
        for j in range(4): a(f"v_cvt_pk_bf16_f32 v{T + j}, v{T + 2 * j}, v{T + 2 * j + 1}")
        a(f"buffer_store_dwordx4 {vr(T)}, v17, {vr(SRD_WS, 4, 's')}, s46 offen")
        if tp < 3: a(f"s_add_u32 s46, s46, {112 * 1024}")
    a(f"s_lshl_b32 s46, s{S_RB}, 4\ns_lshr_b32 s48, s3, 1\ns_lshl_b32 s48, s48, 3\ns_add_u32 s46, s46, s48\ns_lshl_b32 s46, s46, 5\ns_add_u32 s46, s46, s47\ns_lshl_b32 s46, s46, 10\ns_add_u32 s46, s46, {WS_O}")
    for u in U:
        a(f"v_cvt_pk_bf16_f32 v{P(u)}, v{C(u)}, v{C(u) + 1}\nv_cvt_pk_bf16_f32 v{P(u) + 1}, v{C(u) + 2}, v{C(u) + 3}")
        a(f"v_cvt_pk_bf16_f32 v{P(u) + 2}, v{Q(u)}, v{Q(u) + 1}\nv_cvt_pk_bf16_f32 v{P(u) + 3}, v{Q(u) + 2}, v{Q(u) + 3}")
        a(f"buffer_store_dwordx4 {vr(P(u))}, v17, {vr(SRD_WS, 4, 's')}, s46 offen")
        if u < 8: a("s_add_u32 s46, s46, 32768")
    stamp(a, cfg, 2)
    write_stamps(a, cfg, 3, 0)
    a("s_endpgm")


def gen_z(a, cfg):
    a.label("L_k1_z")
    a.hist = []
    L = Loop(a, False, cfg)
    a(f"s_lshl_b32 s46, s{S_IDX}, 1\ns_add_u32 s52, s46, 28\ns_add_u32 s53, s46, 29\ns_mov_b32 s54, s{S_IDX}")
    a(f"s_add_u32 s55, s{S_IDX}, 40\ns_sub_u32 s56, s46, 12\ns_sub_u32 s57, s46, 11")
    a(f"s_cmp_lt_u32 s{S_IDX}, 12\ns_cselect_b32 s52, s52, s55\ns_cselect_b32 s53, s53, s56\ns_cselect_b32 s54, s54, s57")
    a("v_mul_u32_u24 v23, 7168, v23\nv_add_u32 v25, v25, v23")
    for c in range(3):
        a(f"s_lshl_b32 s46, s{52 + c}, 7\ns_add_u32 s46, s46, {4096 - c * 1024}\nv_add_u32 v{10 + c}, s46, v25")
    a(f"s_lshl_b32 s{S_M0X}, s3, 13\ns_mul_i32 s{S_M0W}, s3, 3072\ns_add_u32 s{S_M0W}, s{S_M0W}, {3 * XS_Z}")
    a("s_waitcnt lgkmcnt(0)")
    srd(a, SRD_X, 4, 0x400000)
    srd_biased(a, SRD_W, 36, 0x700000)
    for g in L.dma_x(0) + L.dma_x(1) + L.dma_w(0): a.emit(g)
    srd(a, SRD_WS, S_WSP, WS_SIZE)
    read_bases(a, False)
    gate_loads(a)
    a("s_mov_b32 s64, s52\ns_mov_b32 s65, s53\ns_mov_b32 s66, s54")
    def zero():
        for i in range(192): a(f"v_mov_b32 v{L.ACC + i}, 0")
    if cfg.get("codepf"): cfg["codepf"](a)
    L.run(zero)
    stamp(a, cfg, 1)
    Z = lambda n, u: L.ACC + 4 * (4 * n + u)
    a(f"s_mov_b32 s{S_C1}, {f2u(GELU_C1)}\ns_mov_b32 s{S_C1 + 1}, {f2u(GELU_C1)}\ns_mov_b32 s{S_ONE}, 1.0\ns_mov_b32 s{S_ONE + 1}, 1.0")
    a(f"v_mov_b32 v2, {f2u(GELU_C0)}\nv_mov_b32 v3, {f2u(GELU_C0)}\nv_lshlrev_b32 v1, 4, v0")
    SUM = lambda u: 4 + 4 * u
    tm = [20, 22, 24, 26, 28, 30, 32, 34]
    def gelu(ns, first):
        prs, st = [], []
        for n in ns:
            for h in range(2):
                for u in range(4):
                    prs.append(Z(n, u) + 2 * h)
                    st.append((SUM(u), SUM(u) + 2, first and n == ns[0] and h == 0))
        a.emit(gelu_pairs(prs, tm, S_C1, 2, S_ONE, st))
    isY = f"s_cmp_ge_u32 s{S_IDX}, 12"
    gelu([0, 1, 2, 3], True)
    a(f"{isY}\ns_cbranch_scc1 L_k1_g1")
    gelu([4, 5, 6, 7], False)
    a.label("L_k1_g1")
    a.fence(2)
    for u in range(4):
        a(f"v_add_f32 v{SUM(u)}, v{SUM(u)}, v{SUM(u) + 1}\nv_add_f32 v{SUM(u) + 2}, v{SUM(u) + 2}, v{SUM(u) + 3}")
    for u in range(4): a(f"v_permlane32_swap_b32 v{SUM(u)}, v{SUM(u) + 2}")
    for u in range(4): a(f"v_add_f32 v{SUM(u)}, v{SUM(u)}, v{SUM(u) + 2}")
    a(f"v_permlane16_swap_b32 v{SUM(0)}, v{SUM(1)}\nv_permlane16_swap_b32 v{SUM(2)}, v{SUM(3)}")
    a(f"v_add_f32 v20, v{SUM(0)}, v{SUM(1)}\nv_add_f32 v21, v{SUM(2)}, v{SUM(3)}")
    a(f"s_lshl_b32 s46, s{S_RB}, 2\ns_add_u32 s46, s46, s3\ns_lshl_b32 s46, s46, 13\ns_add_u32 s58, s46, {WS_ST}\ns_lshl_b32 s47, s{S_IDX}, 9\ns_add_u32 s47, s47, s58")
    a(f"v_lshlrev_b32 v22, 3, v0\nbuffer_store_dwordx2 v[20:21], v22, {vr(SRD_WS, 4, 's')}, s47 offen sc1")
    a(f"s_waitcnt vmcnt(0)\ns_barrier")
    a(f"s_lshl_b32 s46, s{S_RB}, 5\nv_mov_b32 v23, s46\nv_mov_b32 v24, 1\ns_cmp_lg_u32 s3, 0\ns_cbranch_scc1 L_k1_noadd")
    a(f"s_mov_b64 exec, 1\nglobal_atomic_add v23, v24, {vr(S_DBG, 2, 's')}\ns_mov_b64 exec, -1")
    a.label("L_k1_noadd")
    stamp(a, cfg, 2)
    def z1(ns, sline):
        a(f"s_lshl_b32 s46, s{S_RB}, 3\ns_lshl_b32 s47, s3, 1\ns_add_u32 s46, s46, s47\ns_mul_i32 s46, s46, {112 * 1024}\ns_lshl_b32 s47, s{sline}, 12\ns_add_u32 s46, s46, s47")
        a(f"s_add_u32 s46, s46, {WS_Z1}\ns_add_u32 s47, s46, {112 * 1024}")
        for k, n in enumerate(ns):
            for tp in range(2):
                b = Z(n, 2 * tp)
                for j in range(4): a(f"v_cvt_pk_bf16_f32 v{b + j}, v{b + 2 * j}, v{b + 2 * j + 1}")
                a(f"buffer_store_dwordx4 {vr(b)}, v1, {vr(SRD_WS, 4, 's')}, s{46 + tp} offen offset:{1024 * k}")
    z1([8, 9, 10, 11], 66)
    a(f"s_cmp_lt_u32 s{S_IDX}, 12\ns_cbranch_scc1 L_k1_z1b")
    a.fence(2)
    z1([4, 5, 6, 7], 65)
    a.label("L_k1_z1b")
    a.fence(2)
    gate_finish(a, 26)
    a("s_mov_b32 s47, 0\ns_cmp_lg_u32 s3, 0\ns_cbranch_scc1 L_k1_polled")
    a.label("L_k1_poll")
    a(f"global_load_dword v24, v23, {vr(S_DBG, 2, 's')} sc1\ns_waitcnt vmcnt(0)\nv_readfirstlane_b32 s46, v24\ns_cmp_ge_u32 s46, 16\ns_cbranch_scc1 L_k1_polled\ns_sleep 1")
    a("s_add_u32 s47, s47, 1\ns_cmp_lt_u32 s47, 0x80000\ns_cbranch_scc1 L_k1_poll")
    a.label("L_k1_polled")
    a("s_barrier")
    stamp(a, cfg, 3)
    a("s_add_u32 s59, s58, 4096")
    for t in range(16):
        a(f"buffer_load_dwordx2 {vr(24 + 2 * t, 2)}, v22, {vr(SRD_WS, 4, 's')}, s{58 + t // 8} offen offset:{512 * (t % 8)} sc1")
    a("v_and_b32 v2, 3, v0\nv_bfe_u32 v3, v0, 2, 1\nv_lshl_or_b32 v2, v3, 3, v2\nv_bfe_u32 v3, v0, 3, 1\nv_lshl_or_b32 v2, v3, 2, v2\nv_bfe_u32 v3, v0, 4, 1\nv_lshl_or_b32 v2, v3, 4, v2")
    a("v_lshlrev_b32 v2, 5, v2\nv_lshrrev_b32 v3, 5, v0\nv_lshl_or_b32 v1, v3, 4, v2")
    a("s_waitcnt vmcnt(0)")
    for w in (8, 4, 2, 1):
        for j in range(w):
            a(f"v_pk_add_f32 {vr(24 + 2 * j, 2)}, {vr(24 + 2 * j, 2)}, {vr(24 + 2 * (j + w), 2)}")
    a("v_mov_b32 v26, v24\nv_mov_b32 v27, v25\nv_permlane32_swap_b32 v24, v26\nv_permlane32_swap_b32 v25, v27")
    inv = f2u(1.0 / 1792)
    a(f"v_mul_f32 v24, {inv}, v24\nv_mul_f32 v25, {inv}, v25\nv_mul_f32 v26, {inv}, v26\nv_mul_f32 v27, {inv}, v27")
    a(f"v_fma_f32 v26, -v24, v24, v26\nv_fma_f32 v27, -v25, v25, v27\nv_add_f32 v26, {f2u(1e-5)}, v26\nv_add_f32 v27, {f2u(1e-5)}, v27")
    a("v_rsq_f32 v4, v26\nv_rsq_f32 v8, v27\nv_mul_f32 v5, -v24, v4\nv_mul_f32 v9, -v25, v8")
    a("v_mov_b32 v6, v4\nv_mov_b32 v7, v5\nv_mov_b32 v10, v8\nv_mov_b32 v11, v9")
    a("v_permlane16_swap_b32 v4, v6\nv_permlane16_swap_b32 v5, v7\nv_permlane16_swap_b32 v8, v10\nv_permlane16_swap_b32 v9, v11")
    def z2(ns, sline):
        a(f"s_lshl_b32 s46, s{S_RB}, 3\ns_lshl_b32 s47, s3, 1\ns_add_u32 s46, s46, s47\ns_mul_i32 s46, s46, {112 * 1024}\ns_sub_u32 s47, s{sline}, 28\ns_lshl_b32 s47, s47, 12\ns_add_u32 s46, s46, s47")
        if WS_Z2N: a(f"s_add_u32 s46, s46, {WS_Z2N}")
        a(f"s_add_u32 s47, s46, {112 * 1024}")
        for k, n in enumerate(ns):
            for u in range(4):
                for h in range(2):
                    p = vr(Z(n, u) + 2 * h, 2)
                    s_ = vr(4 + 2 * u, 2)
                    a(f"v_pk_fma_f32 {p}, {p}, {s_}, {s_} op_sel:[0,0,1] op_sel_hi:[1,0,1]")
            for tp in range(2):
                b = Z(n, 2 * tp)
                for j in range(4): a(f"v_cvt_pk_bf16_f32 v{b + j}, v{b + 2 * j}, v{b + 2 * j + 1}")
            for tp in range(2):
                b = Z(n, 2 * tp)
                a(f"v_permlane16_swap_b32 v{b}, v{b + 2}\nv_permlane16_swap_b32 v{b + 1}, v{b + 3}")
            for tp in range(2):
                a(f"buffer_store_dwordx4 {vr(Z(n, 2 * tp))}, v1, {vr(SRD_WS, 4, 's')}, s{46 + tp} offen offset:{1024 * k}")
    z2([0, 1, 2, 3], 64)
    a(f"{isY}\ns_cbranch_scc1 L_k1_z2b")
    z2([4, 5, 6, 7], 65)
    a.label("L_k1_z2b")
    a.fence(2)
    write_stamps(a, cfg, 4, 0)
    a.label("L_k1_end")
    a("s_endpgm")


def gen_k1(cfg):
    a = Asm()
    common_prologue(a, cfg)
    gen_q(a, cfg)
    gen_z(a, cfg)
    return head("k1_kernel") + a.text() + "L_k1_codeend:\n", desc("k1_kernel", 512, 256)
```

```python
from asm import *
from common import *
from k1 import stamp, write_stamps

LDS_K3 = 65536 + 4 * 14336
SRD_A, SRD_WS = 8, 12
S_M0A, S_M0Z, S_AOFF, S_ZOFF = 24, 25, 26, 27
S_LO = 32
S_MT, S_NT = 34, 35
S_C1, S_ONE = 60, 62
ACC, Z1G, Z1P = 64, 128, 192


def tile_ids(a, smt, snt):
    a(f"s_and_b32 s46, s2, 7\ns_lshr_b32 s47, s2, 3\ns_lshr_b32 s48, s46, 1\ns_lshl_b32 s48, s48, 2\ns_lshr_b32 s49, s47, 3\ns_add_u32 s{smt}, s48, s49")
    a(f"s_and_b32 s48, s46, 1\ns_lshl_b32 s48, s48, 3\ns_and_b32 s49, s47, 7\ns_add_u32 s{snt}, s48, s49")


def gen_k3(cfg):
    a = Asm()
    a("s_cmp_ge_u32 s2, 256\ns_cbranch_scc1 L_k3_end")
    a("s_load_dwordx4 s[4:7], s[0:1], 40\ns_load_dwordx2 s[42:43], s[0:1], 88")
    if cfg.get("wpf3"): touch_ptrs(a)
    if cfg.get("stamp"):
        a("s_memrealtime s[70:71]\ns_memtime s[72:73]")
    a("v_lshrrev_b32 v1, 6, v0\nv_and_b32 v0, 63, v0\nv_readfirstlane_b32 s3, v1")
    tile_ids(a, S_MT, S_NT)
    a(f"s_mov_b32 s{S_LO}, -1\ns_mov_b32 s{S_LO + 1}, 0")
    a("v_lshrrev_b32 v20, 3, v0\nv_and_b32 v21, 7, v0\nv_lshrrev_b32 v22, 4, v0")
    a(f"s_lshl_b32 s48, s{S_MT}, 7\ns_lshl_b32 s49, s3, 5\ns_add_u32 s48, s48, s49\nv_add_u32 v23, s48, v20\nv_lshlrev_b32 v23, 12, v23")
    a("v_xor_b32 v24, v21, v22\nv_xor_b32 v25, 4, v24\nv_lshl_add_u32 v24, v24, 4, v23\nv_lshl_add_u32 v25, v25, 4, v23")
    for j in range(4):
        a(f"v_add_u32 v{2 + j}, {j * 32768 - j * 1024}, v{24 + (j & 1)}")
    a(f"s_mul_i32 s50, s{S_NT}, 7168\ns_lshr_b32 s51, s3, 1\ns_mul_i32 s51, s51, 114688\ns_and_b32 s52, s3, 1\ns_mul_i32 s52, s52, 3584")
    a(f"s_add_u32 s51, s51, s50\ns_add_u32 s51, s51, s52\ns_add_u32 s51, s51, {WS_Z2N}\nv_lshlrev_b32 v7, 4, v0\nv_add_u32 v6, s51, v7")
    a(f"s_lshl_b32 s51, s{S_MT}, 2\ns_add_u32 s51, s51, s3\ns_mul_i32 s53, s51, 114688\ns_add_u32 s50, s50, s53\ns_add_u32 s50, s50, {WS_Z1}\ns_add_u32 s54, s50, 4096")
    a(f"s_lshl_b32 s{S_M0A}, s3, 12\ns_mul_i32 s{S_M0Z}, s3, 3584\ns_add_u32 s{S_M0Z}, s{S_M0Z}, 65536\ns_mov_b32 s{S_AOFF}, 0\ns_mov_b32 s{S_ZOFF}, 0")
    a("s_waitcnt lgkmcnt(0)")
    srd(a, SRD_A, 4, 0x800000)
    srd(a, SRD_WS, 42, WS_SIZE)
    aux = cfg.get("auxsp", "")

    def dma(J):
        s = J % 4
        g = [[f"s_add_u32 m0, s{S_M0A}, {s * 16384}", (f"buffer_load_dwordx4 v2, {vr(SRD_A, 4, 's')}, s{S_AOFF} offen {aux} lds", ("st", J))]]
        for j in (1, 2, 3):
            g.append([(f"buffer_load_dwordx4 v{2 + j}, {vr(SRD_A, 4, 's')}, s{S_AOFF} offen offset:{1024 * j} {aux} lds", ("st", J))])
        g[-1].append(f"s_add_u32 s{S_AOFF}, s{S_AOFF}, 128")
        g.append([f"s_add_u32 m0, s{S_M0Z}, {s * 14336}", (f"buffer_load_dwordx4 v6, {vr(SRD_WS, 4, 's')}, s{S_ZOFF} offen lds", ("st", J))])
        for j in (1, 2):
            g.append([(f"buffer_load_dwordx4 v6, {vr(SRD_WS, 4, 's')}, s{S_ZOFF} offen offset:{1024 * j} lds", ("st", J))])
        g.append([f"s_mov_b64 exec, {vr(S_LO, 2, 's')}", (f"buffer_load_dwordx4 v6, {vr(SRD_WS, 4, 's')}, s{S_ZOFF} offen offset:3072 lds", ("st", J)),
                  "s_mov_b64 exec, -1", f"s_add_u32 s{S_ZOFF}, s{S_ZOFF}, {2 * 114688}"])
        return g

    for g in dma(0): a.emit(g)
    for n in range(7):
        a(f"buffer_load_dwordx4 {vr(Z1P + 4 * n)}, v7, {vr(SRD_WS, 4, 's')}, s{50 if n < 4 else 54} offen offset:{1024 * (n % 4)}", tag="z1")
    a(f"s_lshl_b32 s55, s51, 6\nv_and_b32 v20, 15, v0\nv_lshlrev_b32 v21, 1, v20\nv_add_u32 v21, s55, v21")
    srd(a, 16, 6, 4096)
    a("buffer_load_ushort v16, v21, s[16:19], 0 offen\nbuffer_load_ushort v17, v21, s[16:19], 0 offen offset:32", tag="z1")
    if cfg.get("codepf"): cfg["codepf"](a)
    for J in (1, 2):
        for g in dma(J): a.emit(g)
    a("v_lshrrev_b32 v21, 4, v0\nv_lshrrev_b32 v22, 1, v20\nv_xor_b32 v22, v22, v21\nv_lshlrev_b32 v22, 4, v22\nv_lshl_add_u32 v22, v20, 7, v22")
    a(f"v_add_u32 v8, s{S_M0A}, v22\nv_xor_b32 v9, 64, v8")
    a("v_lshlrev_b32 v10, 3, v0\nv_and_b32 v10, 0xff, v10\nv_lshrrev_b32 v22, 5, v0\nv_lshl_or_b32 v10, v22, 9, v10\nv_add_u32 v10, 65536, v10")
    for i in range(56): a(f"v_mov_b32 v{ACC + i}, 0")
    a(f"s_mov_b32 s{S_C1}, {f2u(GELU_C1)}\ns_mov_b32 s{S_C1 + 1}, {f2u(GELU_C1)}\ns_mov_b32 s{S_ONE}, 1.0\ns_mov_b32 s{S_ONE + 1}, 1.0")
    a(f"v_mov_b32 v12, {f2u(GELU_C0)}\nv_mov_b32 v13, {f2u(GELU_C0)}")
    bf = lambda p, t: 36 * p + 4 * t
    af = lambda p, n: 36 * p + 8 + 4 * n

    def reads(i):
        p, s = i & 1, (i >> 1) % 4
        g = [[f"ds_read_b128 {vr(bf(p, t), 4, 'a')}, v{8 + p} offset:{s * 16384 + t * 2048}"] for t in range(2)]
        for n in range(7):
            o = s * 14336 + p * 7168 + n * 1024
            g.append([f"ds_read_b64_tr_b16 {vr(af(p, n), 2, 'a')}, v10 offset:{o}"])
            g.append([f"ds_read_b64_tr_b16 {vr(af(p, n) + 2, 2, 'a')}, v10 offset:{o + 256}"])
        return g

    a.wait_vm(["z1"])
    stamp(a, cfg, 0)
    for j in range(28):
        a(f"v_lshlrev_b32 v{Z1G + 2 * j}, 16, v{Z1P + j}\nv_and_b32 v{Z1G + 2 * j + 1}, 0xffff0000, v{Z1P + j}")
    a("v_lshlrev_b32 v16, 16, v16\nv_lshlrev_b32 v18, 16, v17\nv_mov_b32 v17, v16\nv_mov_b32 v19, v18")
    a("s_barrier")
    for g in reads(0): a.emit(g)
    a.emit(gelu_pairs([Z1G + 2 * j for j in range(28)], [20, 22, 24, 26, 28, 30, 32], S_C1, 12, S_ONE))
    stamp(a, cfg, 1)
    for i in range(64):
        p = i & 1
        dm = []
        if p:
            J = (i + 1) // 2
            if J < 32:
                a.wait_vm([("st", J)], "lgkmcnt(0)")
                a("s_barrier")
            else:
                a("s_waitcnt lgkmcnt(0)")
            if J + 2 < 32 and J + 2 >= 3: dm = dma(J + 2)
        else:
            a("s_waitcnt lgkmcnt(0)")
        m = []
        for n in range(7):
            for t in ((0, 1) if n % 2 == 0 else (1, 0)):
                m.append(mfma(ACC + 8 * n + 4 * t, vr(af(p, n), 4, "a"), vr(bf(p, t), 4, "a")))
        specs = []
        if i < 63: specs.append((reads(i + 1), 0, 10))
        if dm: specs.append((dm, 0, 13))
        tk = (cfg.get("wpf3") or {}).get(str(i), ())
        if tk: specs.append(([[(x, "pf") if x.startswith("buffer") else x for x in touch(k, 62, 63)] for k in tk], 11, 13))
        a.emit(spread2(m, specs))
    stamp(a, cfg, 2)
    a(f"s_lshl_b32 s46, s51, 4\ns_add_u32 s46, s46, s{S_NT}\ns_mul_i32 s46, s46, 7168\ns_add_u32 s46, s46, {WS_Y}\ns_add_u32 s47, s46, 4096")
    for n in range(7):
        for t in range(2):
            for h in range(2):
                r = vr(ACC + 8 * n + 4 * t + 2 * h, 2)
                a(f"v_pk_add_f32 {r}, {r}, {vr(16 + 2 * t, 2)}")
    for n in range(7):
        for t in range(2):
            for h in range(2):
                r = vr(ACC + 8 * n + 4 * t + 2 * h, 2)
                a(f"v_pk_mul_f32 {r}, {r}, {vr(Z1G + 8 * n + 4 * t + 2 * h, 2)}")
    for blk in range(7):
        T = Z1P + 4 * blk
        if blk < 6:
            t, pp = blk // 3, blk % 3
            src = [ACC + 8 * (2 * pp) + 4 * t, ACC + 8 * (2 * pp + 1) + 4 * t]
        else:
            src = [ACC + 48, ACC + 52]
        for j in range(4):
            b = src[j >> 1] + 2 * (j & 1)
            a(f"v_cvt_pk_bf16_f32 v{T + j}, v{b}, v{b + 1}")
        a(f"buffer_store_dwordx4 {vr(T)}, v7, {vr(SRD_WS, 4, 's')}, s{46 if blk < 4 else 47} offen offset:{1024 * (blk % 4)}")
    write_stamps(a, cfg, 3, 1)
    a.label("L_k3_end")
    a("s_endpgm")
    return head("k3_kernel") + a.text() + "L_k3_codeend:\n", desc("k3_kernel", 384, 256)
```

```python
from asm import *
from common import *
from k1 import stamp, write_stamps
from k3 import tile_ids

LDS_K4 = 4 * 8192
SRD_WO, SRD_WOUT, SRD_WS, SRD_OUT = 8, 12, 16, 20
S_M0, S_WOFF, S_O, S_O2, S_Y, S_Y2 = 24, 25, 26, 27, 28, 29
S_LO = 32
S_MT, S_CT = 34, 35
ACCA, ACCB = 64, 96
ACT = 32


def gen_k4(cfg):
    a = Asm()
    a("s_cmp_ge_u32 s2, 256\ns_cbranch_scc1 L_k4_end")
    a("s_load_dwordx2 s[4:5], s[0:1], 16\ns_load_dwordx2 s[6:7], s[0:1], 56\ns_load_dwordx2 s[38:39], s[0:1], 72\ns_load_dwordx2 s[42:43], s[0:1], 88")
    if cfg.get("stamp"):
        a("s_memrealtime s[70:71]\ns_memtime s[72:73]")
    a("v_lshrrev_b32 v1, 6, v0\nv_and_b32 v0, 63, v0\nv_readfirstlane_b32 s3, v1")
    tile_ids(a, S_MT, S_CT)
    a(f"s_mov_b32 s{S_LO}, -1\ns_mov_b32 s{S_LO + 1}, 0")
    a("v_lshrrev_b32 v20, 3, v0\nv_and_b32 v21, 7, v0\nv_lshrrev_b32 v22, 4, v0\nv_lshrrev_b32 v23, 1, v21\nv_and_b32 v24, 1, v0")
    a(f"s_lshl_b32 s50, s{S_CT}, 7")
    a("v_xor_b32 v25, v23, v22\nv_lshlrev_b32 v25, 5, v25\nv_lshl_add_u32 v25, v24, 4, v25\nv_add_u32 v25, s50, v25")
    a(f"s_lshl_b32 s48, s3, 4\nv_add_u32 v26, s48, v20\nv_lshl_add_u32 v2, v26, 11, v25\nv_add_u32 v3, {8 * 2048 - 1024}, v2")
    a("s_lshl_b32 s48, s3, 3\nv_add_u32 v26, s48, v20\nv_lshl_add_u32 v4, v26, 11, v25")
    a("s_lshl_b32 s48, s3, 2\ns_add_u32 s48, s48, 32\nv_add_u32 v26, s48, v20\ns_and_b32 s49, s3, 1\ns_lshl_b32 s49, s49, 1\nv_add_u32 v27, s49, v22\nv_and_b32 v27, 3, v27")
    a("v_xor_b32 v27, v23, v27\nv_lshlrev_b32 v27, 5, v27\nv_lshl_add_u32 v27, v24, 4, v27\nv_add_u32 v27, s50, v27\nv_lshl_add_u32 v5, v26, 11, v27")
    a("v_lshlrev_b32 v7, 4, v0")
    a(f"s_lshl_b32 s51, s{S_MT}, 2\ns_add_u32 s51, s51, s3")
    a(f"s_lshl_b32 s{S_O}, s51, 16\ns_add_u32 s{S_O}, s{S_O}, {WS_O}\ns_add_u32 s{S_O2}, s{S_O}, 32768")
    a(f"s_mul_i32 s{S_Y}, s51, 114688\ns_add_u32 s{S_Y}, s{S_Y}, {WS_Y}\ns_add_u32 s{S_Y2}, s{S_Y}, 3072")
    a(f"s_lshl_b32 s52, s3, 11\ns_lshl_b32 s53, s3, 10\ns_lshl_b32 s54, s3, 9\ns_add_u32 s54, s54, 4096\ns_mov_b32 s{S_WOFF}, 0")
    a("s_waitcnt lgkmcnt(0)")
    srd(a, SRD_WO, 4, 0x200000)
    srd(a, SRD_WOUT, 6, 0x380000)
    srd(a, SRD_WS, 42, WS_SIZE)
    aux = cfg.get("auxw4", "")
    WSR = vr(SRD_WS, 4, "s")
    NST = 48
    kind = lambda J: "o" if J < 16 else ("A" if J % 2 == 0 else "B")

    def loads(J):
        s = J % 4
        k = kind(J)
        tg = ("st", J)
        W = vr(SRD_WO if k == "o" else SRD_WOUT, 4, "s")
        R = lambda j: vr(ACT + 16 * s + 4 * j, 4, "a")
        g = []
        if k in "oA":
            pre = [f"s_mov_b32 s{S_WOFF}, 0"] if J == 16 else []
            g.append(pre + [f"s_add_u32 m0, s52, {s * 8192}", (f"buffer_load_dwordx4 v2, {W}, s{S_WOFF} offen {aux} lds", tg)])
            g.append([(f"buffer_load_dwordx4 v3, {W}, s{S_WOFF} offen offset:1024 {aux} lds", tg), f"s_add_u32 s{S_WOFF}, s{S_WOFF}, {64 * 2048}"])
        else:
            g.append([f"s_add_u32 m0, s53, {s * 8192}", (f"buffer_load_dwordx4 v4, {W}, s{S_WOFF} offen {aux} lds", tg)])
            g.append([f"s_add_u32 m0, s54, {s * 8192}", f"s_mov_b64 exec, {vr(S_LO, 2, 's')}", (f"buffer_load_dwordx4 v5, {W}, s{S_WOFF} offen {aux} lds", tg),
                      "s_mov_b64 exec, -1", f"s_add_u32 s{S_WOFF}, s{S_WOFF}, {48 * 2048}"])
        if k == "o":
            for kh in range(2):
                for t in range(2):
                    g.append([(f"buffer_load_dwordx4 {R(2 * kh + t)}, v7, {WSR}, s{S_O + t} offen offset:{1024 * kh}", tg)])
            g[-1].append(f"s_add_u32 s{S_O}, s{S_O}, 2048\ns_add_u32 s{S_O2}, s{S_O2}, 2048")
        elif k == "A":
            for kh in range(2):
                for t in range(2):
                    g.append([(f"buffer_load_dwordx4 {R(2 * kh + t)}, v7, {WSR}, s{S_Y + t} offen offset:{1024 * kh}", tg)])
        else:
            for t in range(2):
                g.append([(f"buffer_load_dwordx4 {R(t)}, v7, {WSR}, s{S_Y + t} offen offset:2048", tg)])
            g.append([(f"buffer_load_dwordx4 {R(2)}, v7, {WSR}, s{S_Y2} offen offset:3072", tg), f"s_add_u32 s{S_Y}, s{S_Y}, 7168\ns_add_u32 s{S_Y2}, s{S_Y2}, 7168"])
        return g

    for J in range(3):
        for g in loads(J): a.emit(g)
        if J == 0:
            a(f"v_and_b32 v20, 15, v0\nv_lshlrev_b32 v21, 2, v20\ns_lshl_b32 s55, s51, 7\ns_add_u32 s55, s55, {WS_G}")
            a(f"buffer_load_dword v16, v21, {WSR}, s55 offen\nbuffer_load_dword v17, v21, {WSR}, s55 offen offset:64", tag="g")
            if cfg.get("codepf"): cfg["codepf"](a)
    a("v_lshrrev_b32 v21, 2, v0\nv_and_b32 v22, 3, v0\nv_lshlrev_b32 v23, 7, v21\nv_lshl_add_u32 v23, v22, 3, v23\nv_lshrrev_b32 v24, 1, v21\nv_and_b32 v24, 3, v24")
    for j in range(4):
        a(f"v_xor_b32 v25, {j}, v24\nv_lshl_add_u32 v{8 + j}, v25, 5, v23")
    for i in range(64): a(f"v_mov_b32 v{ACCA + i}, 0")
    srd(a, SRD_OUT, 38, 0x400000)

    subs = [(J, kh) for J in range(NST) for kh in range(2)]
    wf = lambda p, j: 16 * p + 4 * j

    def reads(i):
        J, kh = subs[i]
        p = i & 1
        single = kind(J) == "B" and kh == 1
        g = []
        for j in range(4):
            o = (J % 4) * 8192 + kh * 4096
            g.append([f"ds_read_b64_tr_b16 {vr(wf(p, j), 2, 'a')}, v{8 + j} offset:{o}"])
            if not single:
                g.append([f"ds_read_b64_tr_b16 {vr(wf(p, j) + 2, 2, 'a')}, v{8 + j} offset:{o + 2048}"])
        return g

    a.wait_vm([("st", 0)])
    a("s_barrier")
    stamp(a, cfg, 0)
    for g in reads(0): a.emit(g)
    for i, (J, kh) in enumerate(subs):
        p = i & 1
        k = kind(J)
        single = k == "B" and kh == 1
        ld = []
        if kh == 1 and J + 1 < NST:
            a.wait_vm([("st", J + 1)], "lgkmcnt(0)")
            a("s_barrier")
            if J + 3 < NST: ld = loads(J + 3)
        else:
            a("s_waitcnt lgkmcnt(0)")
        AC = ACCA if k == "o" else ACCB
        m = []
        for t in range(2):
            for j in (range(4) if t == 0 else range(3, -1, -1)):
                base = ACT + 16 * (J % 4)
                if single:
                    m.append(mfma(AC + 16 * t + 4 * j, vr(wf(p, j), 2, "a"), vr(base + 8 + 2 * t, 2, "a"), k16=True))
                else:
                    m.append(mfma(AC + 16 * t + 4 * j, vr(wf(p, j), 4, "a"), vr(base + 8 * kh + 4 * t, 4, "a")))
        specs = []
        if i + 1 < len(subs): specs.append((reads(i + 1), 0, 5))
        if ld: specs.append((ld, 0, 7))
        a.emit(spread2(m, specs))
    stamp(a, cfg, 1)
    a("v_and_b32 v20, 15, v0\nv_lshlrev_b32 v20, 11, v20\nv_bfe_u32 v21, v0, 4, 1\nv_lshl_or_b32 v20, v21, 5, v20\nv_lshrrev_b32 v21, 5, v0\nv_lshl_or_b32 v20, v21, 4, v20")
    a(f"s_lshl_b32 s46, s51, 16\ns_add_u32 s46, s46, s50\ns_add_u32 s47, s46, 32768")
    a("v_mov_b32 v18, v17\nv_mov_b32 v19, v17\nv_mov_b32 v17, v16")
    for i in range(0, 32, 2):
        a(f"v_pk_add_f32 {vr(ACCA + i, 2)}, {vr(ACCA + i, 2)}, {vr(ACCB + i, 2)} neg_lo:[0,1] neg_hi:[0,1]")
    for i in range(0, 32, 2):
        a(f"v_pk_fma_f32 {vr(ACCA + i, 2)}, {vr(ACCA + i, 2)}, {vr(16 + 2 * (i // 16), 2)}, {vr(ACCB + i, 2)}")
    for t in range(2):
        for pr in range(2):
            b = ACCA + 16 * t + 8 * pr
            for j in range(4): a(f"v_cvt_pk_bf16_f32 v{b + j}, v{b + 2 * j}, v{b + 2 * j + 1}")
    for t in range(2):
        for pr in range(2):
            b = ACCA + 16 * t + 8 * pr
            a(f"v_permlane16_swap_b32 v{b}, v{b + 2}\nv_permlane16_swap_b32 v{b + 1}, v{b + 3}")
    for t in range(2):
        for pr in range(2):
            b = ACCA + 16 * t + 8 * pr
            a(f"buffer_store_dwordx4 {vr(b)}, v20, {vr(SRD_OUT, 4, 's')}, s{46 + t} offen offset:{64 * pr}")
    write_stamps(a, cfg, 2, 2)
    a.label("L_k4_end")
    a("s_endpgm")
    return head("k4_kernel") + a.text() + "L_k4_codeend:\n", desc("k4_kernel", 384, 256)
```

```python
import sys, json
from k1 import *
from k3 import *
from k4 import *
HEADER = open("gated_mix__sliding_local_dilated__mixer_gmlp__prompt.s.ref").read().split("; Override launch")[0]

def build(cfg):
    parts = []
    c1, c3, c4 = dict(cfg), dict(cfg), dict(cfg)
    if cfg.get("pf"):
        def mk(start, end, nmax):
            def f(a):
                a("s_lshr_b32 s68, s2, 3\ns_lshl_b32 s68, s68, 2\ns_add_u32 s68, s68, s3")
                code_prefetch(a, start, end, nmax, 96, 40, 40, 68, 128, dry=cfg.get('dry'))
            return f
        c1["codepf"] = mk("k1_kernel", "L_k4_codeend", 128 * 1024)
        if cfg["pf"] > 1:
            c3["codepf"] = mk("k3_kernel", "L_k3_codeend", 32 * 1024)
            c4["codepf"] = mk("k4_kernel", "L_k4_codeend", 32 * 1024)
    ks = [("k1_kernel", gen_k1(c1), LDS_K1), ("k3_kernel", gen_k3(c3), LDS_K3), ("k4_kernel", gen_k4(c4), LDS_K4)]
    s = HEADER
    for name, _, lds in ks:
        s += f"; @launch kernel={name} grid=(256,1,1) block=(256,1,1) lds={lds}\n"
    s += '.amdgcn_target "amdgcn-amd-amdhsa--gfx950"\n'
    for name, (code, d), _ in ks:
        s += code
    for name, (code, d), _ in ks:
        s += d
    return s

if __name__ == "__main__":
    out = sys.argv[1]
    cfg = json.loads(sys.argv[2]) if len(sys.argv) > 2 else {}
    open(out, "w").write(build(cfg))
```

```python
import re

TRANS = ("v_exp_f32", "v_log_f32", "v_rcp_f32", "v_rsq_f32", "v_sqrt_f32", "v_sin_f32", "v_cos_f32")
REG = re.compile(r"^(-?)(?:abs\()?([vas])(?:(\d+)|\[(\d+):(\d+)\])\)?$")


def regs_of(tok):
    tok = tok.strip()
    if tok in ("exec_lo", "exec_hi"):
        return {("exec", 0)}
    if tok in ("vcc", "exec"):
        return {(tok, 0)}
    if tok == "m0":
        return {("m0", 0)}
    m = REG.match(tok)
    if not m:
        return set()
    k = m.group(2)
    if m.group(3) is not None:
        return {(k, int(m.group(3)))}
    return {(k, i) for i in range(int(m.group(4)), int(m.group(5)) + 1)}


class Ins:
    def __init__(self, text):
        self.text = text
        t = text.split(";")[0].strip()
        self.op = t.split()[0]
        rest = re.sub(r"(op_sel(_hi)?|neg_lo|neg_hi):\[[0-9,]*\]", "", t[len(self.op):]).strip()
        ops = [o.strip() for o in rest.split(",")] if rest else []
        if ops:
            last = ops[-1].split()
            ops[-1] = last[0] if last else ""
            self.mods = last[1:]
        else:
            self.mods = []
        self.ops = ops
        op = self.op
        self.mfma = op.startswith("v_mfma")
        self.valu = op.startswith("v_") and not self.mfma
        self.trans = op.startswith(TRANS)
        self.perm = op.startswith("v_permlane")
        self.dpp = any(m.startswith(("row_", "quad_perm", "wave_")) for m in self.mods)
        self.vmem = op.startswith(("buffer_", "global_"))
        self.ds = op.startswith("ds_")
        self.salu = op.startswith("s_")
        self.store = self.vmem and ("store" in op or "atomic" in op)
        self.lds_dma = self.vmem and ("lds" in self.mods or "load_lds" in op)
        R = [regs_of(o) for o in ops]
        w, r = set(), set()
        self.srcC = set()
        self.sdata = set()
        if self.mfma:
            w = R[0]
            r = R[1] | R[2] | R[3]
            self.srcC = R[3]
            self.srcAB = R[1] | R[2]
            self.passes = 8 if "32x32" in op else 4
        elif self.perm:
            w = R[0] | R[1]
            r = R[0] | R[1]
        elif op.startswith("v_cmp"):
            w = R[0]
            r = set().union(*R[1:])
        elif op.startswith(("v_add_co", "v_addc_co", "v_sub_co")):
            w = R[0] | R[1]
            r = set().union(*R[2:])
        elif self.valu:
            w = R[0]
            r = set().union(*R[1:]) if len(R) > 1 else set()
            if op.startswith(("v_fmac", "v_dot2c", "v_writelane")) or self.dpp:
                r |= R[0]
        elif self.vmem:
            if op.startswith(("buffer_inv", "buffer_wbl2")):
                pass
            elif self.lds_dma:
                r = set().union(*R) | {("m0", 0)}
            elif self.store:
                r = set().union(*R)
                if op.startswith("buffer_"):
                    self.sdata = R[0]
                elif "atomic" in op and "sc0" in self.mods:
                    w = R[0]
                    r = set().union(*R[1:])
                else:
                    self.sdata = R[1]
            else:
                w = R[0]
                r = set().union(*R[1:])
        elif self.ds:
            if op.startswith(("ds_write", "ds_add")):
                r = set().union(*R)
            else:
                w = R[0]
                r = set().union(*R[1:])
        elif self.salu:
            if op.startswith(("s_cmp", "s_cbranch", "s_waitcnt", "s_barrier", "s_nop", "s_branch", "s_endpgm", "s_sleep", "s_setprio")):
                r = set().union(*R) if R else set()
            else:
                w = R[0] if R else set()
                r = set().union(*R[1:]) if len(R) > 1 else set()
                if "saveexec" in op:
                    w |= {("exec", 0)}
        self.w, self.r = w, r
        self.wide = self.store and ("x4" in op or "x3" in op)
        self.states = 1
        if op == "s_nop":
            self.states = int(ops[0]) + 1


def sg(s):
    return {x for x in s if x[0] in ("s", "vcc")}


def need(p, c):
    n = 0
    if p.mfma:
        ps = p.passes
        if c.mfma:
            if p.w & c.srcAB:
                n = max(n, ps + 4)
            if p.w & c.srcC and not (p.w == c.srcC and ps == c.passes):
                n = max(n, ps + 2)
            if p.w & c.w and not (p.w & c.srcC):
                n = max(n, ps + 2)
        elif (c.valu or c.vmem or c.ds) and (p.w & (c.r | c.w)):
            n = max(n, ps + 4)
        if c.valu and (p.srcC & c.w):
            n = max(n, ps - 1)
    if p.valu:
        if c.mfma and (p.w & c.r):
            n = max(n, 2)
        if (c.perm or c.dpp) and (p.w & c.r):
            n = max(n, 2)
        if c.op.startswith(("v_readfirstlane", "v_readlane")) and (p.w & c.r):
            n = max(n, 1)
        if p.trans and c.valu and not c.trans and (p.w & c.r):
            n = max(n, 1)
        s = sg(p.w)
        if s:
            if c.vmem and (s & c.r):
                n = max(n, 5)
            if c.valu and (s & c.r):
                n = max(n, 4 if c.op.startswith(("v_readlane", "v_writelane")) else 2)
            if c.salu and (s & c.r):
                n = max(n, 2)
        if ("exec", 0) in p.w:
            n = max(n, 5)
    if p.salu and ("m0", 0) in p.w and c.lds_dma:
        n = max(n, 1)
    if p.wide and (p.sdata & c.w):
        n = max(n, 2)
    return n


class Asm:
    count = 0
    def __init__(self):
        Asm.count += 1
        self.uid = Asm.count
        self.out = []
        self.hist = []
        self.vm = []
        self.nlab = 0

    def raw(self, s):
        self.out.append(s)

    def label(self, name):
        self.out.append(name + ":")

    def newlabel(self, base):
        self.nlab += 1
        return f"{base}_{self.uid}_{self.nlab}"

    def one(self, text, tag=None):
        c = Ins(text)
        dist, pad = 0, 0
        for p in reversed(self.hist):
            pad = max(pad, need(p, c) - dist)
            dist += p.states
            if dist >= 14:
                break
        while pad > 0:
            k = min(pad, 16)
            nop = Ins(f"s_nop {k - 1}")
            self.hist.append(nop)
            self.out.append("    " + nop.text)
            pad -= k
        self.hist.append(c)
        self.hist = self.hist[-24:]
        self.out.append("    " + text)
        if c.vmem:
            self.vm.append(tag)

    def __call__(self, s, tag=None):
        for l in s.split("\n"):
            l = l.strip()
            if not l:
                continue
            if l.endswith(":"):
                self.label(l[:-1])
            else:
                self.one(l, tag)

    def emit(self, items):
        for it in items:
            if isinstance(it, tuple):
                self(it[0], it[1])
            else:
                self(it)

    def vm_left(self, tags):
        for n, t in enumerate(reversed(self.vm)):
            if t in tags:
                return n
        return None

    def wait_vm(self, tags, extra=""):
        n = self.vm_left(tags)
        if n is None:
            if extra:
                self("s_waitcnt " + extra)
            return
        self(f"s_waitcnt vmcnt({min(n, 63)}) {extra}".strip())

    def fence(self, states=14):
        self(f"s_nop {min(states, 16) - 1}")
        self.hist = []

    def text(self):
        return "\n".join(self.out) + "\n"


def spread(main, groups, first=0, last=None):
    n = len(main)
    last = n - 1 if last is None else min(last, n - 1)
    gaps = [[] for _ in range(n)]
    for j, g in enumerate(groups):
        gaps[first + (j * (last - first + 1)) // len(groups)].extend(g)
    out = []
    for m, g in zip(main, gaps):
        out.append(m)
        out.extend(g)
    return out


def spread2(main, specs):
    n = len(main)
    gaps = [[] for _ in range(n)]
    for groups, first, last in specs:
        last = min(last, n - 1)
        for j, g in enumerate(groups):
            gaps[first + (j * (last - first + 1)) // len(groups)].extend(g)
    out = []
    for m, g in zip(main, gaps):
        out.append(m)
        out.extend(g)
    return out


def head(name):
    return f".text\n.globl {name}\n.p2align 8\n.type {name},@function\n{name}:\n"


def desc(name, vgpr, accum, sgpr=102):
    return f""".section .rodata,"a"
.p2align 6
.amdhsa_kernel {name}
  .amdhsa_next_free_vgpr {vgpr}
  .amdhsa_next_free_sgpr {sgpr}
  .amdhsa_accum_offset {accum}
  .amdhsa_group_segment_fixed_size 0
  .amdhsa_kernarg_size 96
  .amdhsa_user_sgpr_count 2
  .amdhsa_user_sgpr_kernarg_segment_ptr 1
  .amdhsa_system_sgpr_workgroup_id_x 1
  .amdhsa_float_denorm_mode_32 3
.end_amdhsa_kernel
"""
```

```python
WS_Z2N = 0x0000000
WS_Z1  = 0x0700000
WS_O   = 0x0E00000
WS_Y   = 0x1200000
WS_G   = 0x1900000
WS_ST  = 0x1910000
WS_SIZE = 0x1A00000
ARG = dict(x=0, wqkv=8, wo=16, w_in=32, w_sp=40, b_sp=48, w_out=56, gate=64, out=72, dbg=80, ws=88)

def srd(a, d, base, size):
    a(f"s_mov_b32 s{d}, s{base}\ns_mov_b32 s{d+1}, s{base+1}\ns_mov_b32 s{d+2}, {hex(size)}\ns_mov_b32 s{d+3}, 0x20000")

def srd_biased(a, d, base, size, bias=4096):
    a(f"s_sub_u32 s{d}, s{base}, {bias}\ns_subb_u32 s{d+1}, s{base+1}, 0\ns_mov_b32 s{d+2}, {hex(size + bias)}\ns_mov_b32 s{d+3}, 0x20000")

def vr(b, n=4, k="v"):
    return f"{k}[{b}:{b + n - 1}]"

def mfma(d, A, B, C=None, dk="v", k16=False):
    op = "v_mfma_f32_16x16x16_bf16" if k16 else "v_mfma_f32_16x16x32_bf16"
    D = vr(d, 4, dk)
    return f"{op} {D}, {A}, {B}, {D if C is None else C}"

GELU_C0 = -2.302208198144325
GELU_C1 = GELU_C0 * 0.044715
import struct
def f2u(x):
    return "0x%08x" % struct.unpack("<I", struct.pack("<f", x))[0]

def gelu_pairs(pairs, tmps, sC1, vC0, sOne, stats=None):
    out = []
    nb = len(tmps)
    for b0 in range(0, len(pairs), nb):
        ps = pairs[b0:b0 + nb]
        P = [vr(p, 2) for p in ps]
        T = [vr(t, 2) for t in tmps[:len(ps)]]
        out += [f"v_pk_mul_f32 {t}, {p}, {p}" for p, t in zip(P, T)]
        out += [f"v_pk_fma_f32 {t}, {t}, {vr(sC1, 2, 's')}, {vr(vC0, 2)}" for t in T]
        out += [f"v_pk_mul_f32 {t}, {t}, {p}" for p, t in zip(P, T)]
        for t in tmps[:len(ps)]:
            out += [f"v_exp_f32 v{t}, v{t}", f"v_exp_f32 v{t+1}, v{t+1}"]
        out += [f"v_pk_add_f32 {t}, {t}, {vr(sOne, 2, 's')}" for t in T]
        for t in tmps[:len(ps)]:
            out += [f"v_rcp_f32 v{t}, v{t}", f"v_rcp_f32 v{t+1}, v{t+1}"]
        out += [f"v_pk_mul_f32 {p}, {p}, {t}" for p, t in zip(P, T)]
        if stats:
            for p, (s, q, first) in zip(P, stats[b0:b0 + nb]):
                if first:
                    out.append(f"v_pk_mul_f32 {vr(q, 2)}, {p}, {p}")
                    out.append(f"v_pk_mul_f32 {vr(s, 2)}, {p}, {vr(sOne, 2, 's')}")
                else:
                    out.append(f"v_pk_fma_f32 {vr(q, 2)}, {p}, {p}, {vr(q, 2)}")
                    out.append(f"v_pk_add_f32 {vr(s, 2)}, {vr(s, 2)}, {p}")
    return out

def code_prefetch(a, start, end, nbytes_max, sbase, vtmp, vdst, slice_sgpr, nslices, dry=False):
    per = -(-nbytes_max // nslices // 128) * 128
    assert per <= 64 * 128 and sbase % 4 == 0
    lab = a.newlabel("L_pc")
    a(f"s_getpc_b64 {vr(sbase, 2, 's')}")
    a.label(lab)
    a(f"s_mov_b32 s{sbase+4}, s{sbase}\ns_mov_b32 s{sbase+5}, s{sbase+1}")
    a(f"s_sub_u32 s{sbase}, s{sbase}, {lab}-{start}\ns_subb_u32 s{sbase+1}, s{sbase+1}, 0")
    a(f"s_mov_b32 s{sbase+2}, {end}-{start}\ns_mov_b32 s{sbase+3}, 0x20000")
    a(f"v_lshlrev_b32 v{vtmp}, 7, v0\nv_min_u32 v{vtmp}, {per - 128}, v{vtmp}")
    a(f"s_mul_i32 s{sbase+4}, s{slice_sgpr}, {per}\nv_add_u32 v{vtmp}, s{sbase+4}, v{vtmp}")
    if not dry:
        a(f"buffer_load_dword v{vdst}, v{vtmp}, {vr(sbase, 4, 's')}, 0 offen", tag="pf")
```

```python
from asm import *
from common import *

XS_Q, XS_Z = 34816, 32768
WS_Q, WS_Z = 14336, 12288
LDS_K1 = 3 * XS_Q + 4 * WS_Q
S_WAVE = 3
SRD_X, SRD_W, SRD_W2, SRD_WS = 8, 12, 16, 20
S_XS, S_WOFF, S_W2OFF, S_XD, S_XR, S_M0X, S_M0W = 24, 25, 26, 27, 28, 29, 30
S_LO = 32
S_CNT, S_RB, S_IDX, S_M0H = 34, 35, 44, 45
S_DBG, S_WSP = 40, 42
S_T = 46
S_C1, S_ONE = 60, 62
SRD_AUX = 4
GATE_A = 160


def common_prologue(a, cfg):
    a("s_cmp_ge_u32 s2, 256\ns_cbranch_scc1 L_k1_end")
    a("s_load_dwordx4 s[4:7], s[0:1], 0\ns_load_dwordx2 s[36:37], s[0:1], 32\ns_load_dwordx2 s[38:39], s[0:1], 64\ns_load_dwordx4 s[40:43], s[0:1], 80")
    if cfg.get("stamp"):
        a("s_memrealtime s[70:71]\ns_memtime s[72:73]")
    a("v_lshrrev_b32 v1, 6, v0\nv_and_b32 v0, 63, v0\nv_readfirstlane_b32 s3, v1")
    a(f"s_and_b32 s46, s2, 7\ns_lshr_b32 s47, s2, 3\ns_and_b32 s{S_RB}, s47, 7\ns_lshr_b32 s47, s47, 3")
    a(f"s_and_b32 s48, s47, 1\ns_lshl_b32 s46, s46, 1\ns_add_u32 s{S_IDX}, s46, s48")
    a(f"s_mov_b32 s{S_LO}, -1\ns_mov_b32 s{S_LO+1}, 0")
    a("v_lshrrev_b32 v20, 3, v0\nv_and_b32 v21, 7, v0\nv_lshrrev_b32 v22, 4, v0")
    a(f"s_lshl_b32 s48, s{S_RB}, 8\ns_lshl_b32 s49, s3, 6\ns_add_u32 s48, s48, s49\nv_add_u32 v23, s48, v20\nv_lshlrev_b32 v23, 11, v23")
    a("v_xor_b32 v24, v21, v22\nv_xor_b32 v25, 4, v24\nv_lshl_add_u32 v24, v24, 4, v23\nv_lshl_add_u32 v25, v25, 4, v23")
    for j in range(8):
        a(f"v_add_u32 v{2 + j}, {j * 16384 - (j % 4) * 1024}, v{24 + (j & 1)}")
    a("s_lshl_b32 s49, s3, 3\nv_add_u32 v23, s49, v20")
    a("s_and_b32 s50, s3, 1\ns_lshl_b32 s50, s50, 1\nv_and_b32 v24, 1, v22\nv_or_b32 v24, s50, v24")
    a("v_lshrrev_b32 v25, 1, v21\nv_xor_b32 v25, v25, v24\nv_lshlrev_b32 v25, 5, v25\nv_and_b32 v26, 1, v0\nv_lshl_add_u32 v25, v26, 4, v25")
    a(f"s_mov_b32 s{S_XS}, 0\ns_mov_b32 s{S_WOFF}, 0\ns_mov_b32 s{S_W2OFF}, 0\ns_mov_b32 s{S_XD}, 0\ns_mov_b32 s{S_XR}, 0")
    a("s_cmp_ge_u32 s47, 2\ns_cbranch_scc1 L_k1_z")


def read_bases(a, q):
    XS = XS_Q if q else XS_Z
    WB = 3 * XS
    blk = 3584 if q else 3072
    a("v_and_b32 v20, 15, v0\nv_lshrrev_b32 v21, 4, v0\nv_lshrrev_b32 v22, 1, v20\nv_xor_b32 v22, v22, v21")
    a("v_lshlrev_b32 v22, 4, v22\nv_lshl_add_u32 v22, v20, 7, v22")
    if q:
        a("s_lshr_b32 s49, s3, 1\ns_lshl_b32 s49, s49, 14")
    else:
        a("s_lshl_b32 s49, s3, 13")
    a("v_add_u32 v14, s49, v22\nv_xor_b32 v15, 64, v14\nv_mov_b32 v16, v14\nv_mov_b32 v17, v15")
    a("v_lshrrev_b32 v20, 2, v0\nv_and_b32 v20, 3, v20\nv_and_b32 v22, 3, v0")
    a("v_lshrrev_b32 v23, 1, v20\nv_and_b32 v24, 1, v21\nv_lshl_or_b32 v23, v24, 1, v23")
    a(f"v_mul_u32_u24 v25, {blk}, v21\nv_lshl_add_u32 v26, v20, 7, v25\nv_lshl_add_u32 v26, v22, 3, v26\nv_add_u32 v26, {WB}, v26")
    if q:
        a("s_and_b32 s49, s3, 1\ns_lshl_b32 s50, s49, 1\nv_xor_b32 v30, s50, v23\nv_lshl_add_u32 v18, v30, 5, v26\nv_xor_b32 v30, 1, v30\nv_lshl_add_u32 v19, v30, 5, v26")
        a(f"v_lshl_add_u32 v26, v20, 6, v25\nv_lshl_add_u32 v26, v22, 3, v26\nv_add_u32 v26, {WB + 3072}, v26")
        a("v_xor_b32 v30, s49, v24\nv_lshl_add_u32 v28, v30, 5, v26")
    else:
        for j, r in enumerate((18, 19, 28, 29)):
            a(f"v_xor_b32 v30, {j}, v23\nv_lshl_add_u32 v{r}, v30, 5, v26")


def gate_loads(a):
    a("s_lshl_b32 s49, s2, 3\ns_lshl_b32 s50, s3, 1\ns_add_u32 s49, s49, s50\ns_lshl_b32 s49, s49, 11\nv_lshlrev_b32 v20, 4, v0")
    a("s_add_u32 s50, s49, 2048")
    for t, so in ((0, "s49"), (1, "s50")):
        for h in range(2):
            r = GATE_A + 8 * t + 4 * h
            a(f"buffer_load_dwordx4 {vr(r, 4, 'a')}, v20, {vr(SRD_X, 4, 's')}, {so} offen offset:{1024 * h}", tag="gate")
    srd(a, SRD_AUX, 38, 2048)
    for h in range(2):
        r = GATE_A + 16 + 4 * h
        a(f"buffer_load_dwordx4 {vr(r, 4, 'a')}, v20, {vr(SRD_AUX, 4, 's')}, 0 offen offset:{1024 * h}", tag="gate")


def gate_finish(a, T):
    for i in range(24):
        a(f"v_accvgpr_read_b32 v{T + i}, a{GATE_A + i}")
    s0, s1 = T + 24, T + 25
    a(f"v_mov_b32 v{s0}, 0\nv_mov_b32 v{s1}, 0")
    for i in range(8):
        a(f"v_dot2c_f32_bf16 v{s0}, v{T + i}, v{T + 16 + i}\nv_dot2c_f32_bf16 v{s1}, v{T + 8 + i}, v{T + 16 + i}")
    a("s_nop 2")
    t = T + 26
    a(f"v_permlane32_swap_b32 v{s0}, v{s1}\nv_add_f32 v{s0}, v{s0}, v{s1}\nv_mov_b32 v{t}, v{s0}")
    a(f"v_permlane16_swap_b32 v{s0}, v{t}\nv_add_f32 v{s0}, v{s0}, v{t}")
    for sh in (8, 4, 2, 1):
        a(f"v_add_f32_dpp v{s0}, v{s0}, v{s0} row_ror:{sh} row_mask:0xf bank_mask:0xf")
    a(f"v_mul_f32 v{s0}, {f2u(-1.4426950408889634)}, v{s0}\nv_exp_f32 v{s0}, v{s0}\nv_add_f32 v{s0}, 1.0, v{s0}\nv_rcp_f32 v{s0}, v{s0}")
    a(f"s_lshl_b32 s49, s2, 5\ns_lshl_b32 s50, s3, 3\ns_add_u32 s49, s49, s50\ns_add_u32 s49, s49, {WS_G}")
    a(f"v_lshrrev_b32 v{t}, 3, v0\nv_and_b32 v{s1}, 31, v0\nv_cmp_eq_u32 vcc, 0, v{s1}")
    a("s_and_saveexec_b64 s[50:51], vcc")
    a(f"buffer_store_dword v{s0}, v{t}, {vr(SRD_WS, 4, 's')}, s49 offen")
    a("s_mov_b64 exec, s[50:51]")


class Loop:
    def __init__(self, a, q, cfg):
        self.a, self.q, self.cfg = a, q, cfg
        self.XS = XS_Q if q else XS_Z
        self.WS = WS_Q if q else WS_Z
        self.WP = 6144 if q else 7168
        self.nx, self.nw = (9, 7) if q else (4, 12)
        self.ACC = 48 if q else 64

    def xf(self, p, u): return 64 * p + 4 * u
    def wf(self, p, n): return 64 * p + 4 * self.nx + 4 * n

    def acc(self, n, u):
        if not self.q:
            return self.ACC + 4 * (4 * n + u), "v"
        if n < 2:
            return self.ACC + 8 * (u - 1) + 4 * n, "v"
        if n < 4:
            return self.ACC + 64 + 8 * u + 4 * (n - 2), "v"
        if n < 6:
            return self.ACC + 136 + 36 * (n - 4) + 4 * u, "v"
        return 128 + 4 * (u - 1), "a"

    def dma_w(self, slot):
        ax = self.cfg.get("auxw", "")
        g = [[f"s_add_u32 m0, s{S_M0W}, {slot * self.WS}", f"buffer_load_dwordx4 v10, {vr(SRD_W, 4, 's')}, s{S_WOFF} offen {ax} lds"]]
        g.append([f"buffer_load_dwordx4 v11, {vr(SRD_W, 4, 's')}, s{S_WOFF} offen offset:1024 {ax} lds"])
        g.append([f"buffer_load_dwordx4 v12, {vr(SRD_W, 4, 's')}, s{S_WOFF} offen offset:2048 {ax} lds", f"s_add_u32 s{S_WOFF}, s{S_WOFF}, {32 * self.WP}"])
        if self.q:
            g.append([f"s_mov_b64 exec, {vr(S_LO, 2, 's')}", f"buffer_load_dwordx4 v13, {vr(SRD_W2, 4, 's')}, s{S_W2OFF} offen offset:3072 {ax} lds",
                      "s_mov_b64 exec, -1", f"s_add_u32 s{S_W2OFF}, s{S_W2OFF}, {32 * 7168}"])
        return g

    def dma_x(self, h):
        ax = self.cfg.get("auxx", "")
        g = []
        for j in range(4):
            pre = []
            if j == 0:
                pre = [f"s_add_u32 m0, s{S_M0X}, s{S_XD}"] + ([f"s_add_u32 m0, m0, 4096"] if h else [])
            g.append(pre + [f"buffer_load_dwordx4 v{2 + 4 * h + j}, {vr(SRD_X, 4, 's')}, s{S_XS} offen offset:{j * 1024} {ax} lds"])
        if h == 1:
            if self.q:
                g.append([f"s_add_u32 m0, s{S_M0H}, s{S_XD}", f"s_mov_b64 exec, {vr(S_LO, 2, 's')}",
                          f"buffer_load_dwordx4 v1, {vr(SRD_X, 4, 's')}, s{S_XS} offen {ax} lds", "s_mov_b64 exec, -1"])
            g[-1] += [f"s_add_u32 s{S_XS}, s{S_XS}, 128", f"s_add_u32 s{S_XD}, s{S_XD}, {self.XS}",
                      f"s_cmp_eq_u32 s{S_XD}, {3 * self.XS}", f"s_cselect_b32 s{S_XD}, 0, s{S_XD}"]
        return g

    def n_w(self): return 4 if self.q else 3
    def n_x(self, h): return 4 + (1 if (h and self.q) else 0)

    def reads(self, i):
        p = i & 1
        g = [[f"ds_read_b128 {vr(self.xf(p, u), 4, 'a')}, v{16 + p} offset:{u * 2048}"] for u in range(self.nx)]
        off = (i % 4) * self.WS
        for n in range(self.nw):
            r = self.wf(p, n)
            st = 512
            if self.q:
                v, o = (18 + (n & 1), off + (n >> 1) * 1024) if n < 6 else (28, off)
                if n == 6: st = 256
            else:
                v, o = (18, 19, 28, 29)[n % 4], off + (n // 4) * 1024
            g.append([f"ds_read_b64_tr_b16 {vr(r, 2, 'a')}, v{v} offset:{o}"])
            g.append([f"ds_read_b64_tr_b16 {vr(r + 2, 2, 'a')}, v{v} offset:{o + st}"])
        return g

    def mfmas(self, i):
        p = i & 1
        out = []
        if self.q:
            for u in range(9):
                ns = [2, 3, 4, 5] if u == 0 else list(range(7))
                if u & 1: ns = ns[::-1]
                for n in ns:
                    d, k = self.acc(n, u)
                    W, X = vr(self.wf(p, n), 4, "a"), vr(self.xf(p, u), 4, "a")
                    out.append(mfma(d, X, W, dk=k) if n in (4, 5) else mfma(d, W, X, dk=k))
        else:
            for n in range(12):
                for u in (range(4) if n % 2 == 0 else range(3, -1, -1)):
                    d, k = self.acc(n, u)
                    out.append(mfma(d, vr(self.wf(p, n), 4, "a"), vr(self.xf(p, u), 4, "a")))
        return out

    def step(self, i, dw, dx, wait, last=False):
        a = self.a
        a(f"s_waitcnt vmcnt({wait}) lgkmcnt(0)\ns_barrier")
        m = self.mfmas(i)
        n = len(m)
        rd = [] if last else self.reads(i + 1)
        if rd and (i & 1):
            XS = self.XS
            rd = [[f"s_add_u32 s{S_XR}, s{S_XR}, {XS}", f"s_cmp_eq_u32 s{S_XR}, {3 * XS}", f"s_cselect_b32 s{S_XR}, 0, s{S_XR}"],
                  [f"v_add_u32 v16, s{S_XR}, v14", f"v_add_u32 v17, s{S_XR}, v15"]] + rd
        dm = (self.dma_w(i % 4) if dw else []) + (self.dma_x(1 - (i & 1)) if dx else [])
        specs = []
        if rd: specs.append((rd, 0, int(n * 0.8)))
        if dm: specs.append((dm, 0, int(n * 0.9)))
        a.emit(spread2(m, specs))

    def run(self, zero_acc):
        a = self.a
        nd = lambda t: (self.n_w() if t <= 27 else 0) + (self.n_x(1 - (t & 1)) if t <= 26 else 0)
        for g in self.dma_w(1) + self.dma_x(0) + self.dma_w(2) + self.dma_x(1) + self.dma_w(3) + self.dma_x(0):
            a.emit(g)
        zero_acc()
        a(f"s_waitcnt vmcnt({nd(-3) + nd(-2) + nd(-1)})\ns_barrier")
        stamp(a, self.cfg, 0)
        for g in self.reads(0): a.emit(g)
        lab = "L_k1_loop_q" if self.q else "L_k1_loop_z"
        a(f"s_mov_b32 s{S_CNT}, 0")
        a.fence(2)
        a.label(lab)
        for i in range(4):
            self.step(i, True, True, nd(i - 1) + nd(i - 2))
        a(f"s_add_u32 s{S_CNT}, s{S_CNT}, 1\ns_cmp_lt_u32 s{S_CNT}, 6\ns_cbranch_scc1 {lab}")
        for i in range(24, 32):
            self.step(i, i <= 27, i <= 26, nd(i - 1) + nd(i - 2), last=(i == 31))


def stamp(a, cfg, k):
    if cfg.get("stamp"):
        a(f"s_memtime s[{74 + 2 * k}:{75 + 2 * k}]")


def write_stamps(a, cfg, n, slot, wsreg=S_WSP):
    if not cfg.get("stamp"):
        return
    a("s_memtime s[90:91]\ns_memrealtime s[92:93]\ns_waitcnt lgkmcnt(0)")
    vals = [70, 92] + [74 + 2 * k for k in range(n)] + [90]
    for j, s in enumerate(vals):
        if j >= 2: a(f"s_sub_u32 s{s}, s{s}, s72")
        a(f"v_mov_b32 v{8 + j}, s{s}")
    a(f"s_lshl_b32 s46, s2, 2\ns_add_u32 s46, s46, s3\ns_lshl_b32 s46, s46, 5\ns_add_u32 s46, s46, {0x1B00000 + slot * 0x10000}\nv_mov_b32 v1, s46")
    a("v_cmp_eq_u32 vcc, 0, v0\ns_and_saveexec_b64 s[50:51], vcc")
    srd(a, 96, wsreg, 0x1C00000)
    a("buffer_store_dwordx4 v[8:11], v1, s[96:99], 0 offen\nbuffer_store_dwordx4 v[12:15], v1, s[96:99], 0 offen offset:16")
    a("s_mov_b64 exec, s[50:51]")


def gen_q(a, cfg):
    L = Loop(a, True, cfg)
    a(f"v_mul_u32_u24 v23, 6144, v23\nv_add_u32 v25, v25, v23\ns_lshl_b32 s48, s{S_IDX}, 7\nv_add_u32 v25, s48, v25")
    for c in range(3):
        a(f"v_add_u32 v{10 + c}, {c * 2048 - c * 1024}, v25")
    a("v_lshrrev_b32 v23, 2, v0\nv_and_b32 v23, 7, v23\nv_add_u32 v23, s49, v23\nv_mul_u32_u24 v23, 7168, v23")
    a("s_and_b32 s50, s3, 1\nv_lshrrev_b32 v24, 1, v0\nv_and_b32 v24, 1, v24\nv_xor_b32 v24, s50, v24\nv_lshlrev_b32 v24, 5, v24\nv_lshl_add_u32 v24, v26, 4, v24")
    a(f"s_lshl_b32 s48, s{S_IDX}, 6\ns_add_u32 s48, s48, {2560 + 4096 - 3072}\nv_add_u32 v24, v24, v23\nv_add_u32 v13, s48, v24")
    a(f"s_lshl_b32 s48, s{S_RB}, 8\ns_max_u32 s48, s48, 16\ns_sub_u32 s48, s48, 16\ns_lshl_b32 s50, s3, 2\ns_add_u32 s48, s48, s50")
    a("v_add_u32 v23, s48, v20\nv_lshlrev_b32 v23, 11, v23\ns_lshl_b32 s50, s3, 1\nv_add_u32 v24, s50, v22\nv_and_b32 v24, 7, v24\nv_xor_b32 v24, v24, v21\nv_lshl_add_u32 v1, v24, 4, v23")
    a(f"s_lshl_b32 s{S_M0X}, s3, 13\ns_add_u32 s{S_M0X}, s{S_M0X}, 2048\ns_lshl_b32 s{S_M0H}, s3, 9")
    a(f"s_mul_i32 s{S_M0W}, s3, 3584\ns_add_u32 s{S_M0W}, s{S_M0W}, {3 * XS_Q}")
    a("s_waitcnt lgkmcnt(0)")
    srd(a, SRD_X, 4, 0x400000)
    srd(a, SRD_W, 6, 0x600000)
    srd_biased(a, SRD_W2, 36, 0x700000)
    for g in L.dma_x(0) + L.dma_x(1) + L.dma_w(0): a.emit(g)
    srd(a, SRD_WS, S_WSP, WS_SIZE)
    read_bases(a, True)
    gate_loads(a)
    def zero():
        for i in range(208): a(f"v_mov_b32 v{L.ACC + i}, 0")
        for i in range(32): a(f"v_accvgpr_write_b32 a{128 + i}, 0")
    if cfg.get("codepf"): cfg["codepf"](a)
    L.run(zero)
    stamp(a, cfg, 1)
    gate_finish(a, 2)
    Q = lambda u: L.ACC + 8 * (u - 1)
    K = lambda u: L.ACC + 64 + 8 * u
    V = lambda n, u: L.ACC + 136 + 36 * n + 2 * u
    P = lambda u: Q(u) + 4
    C = lambda u: K(u) + 4
    U = range(1, 9)
    a("v_and_b32 v2, 15, v0\nv_lshrrev_b32 v3, 4, v0\nv_and_b32 v4, 1, v0\nv_lshl_add_u32 v5, v3, 2, v4\nv_add_u32 v6, 2, v5")
    a("v_cmp_eq_u32 s[50:51], 1, v4\nv_cmp_le_u32 s[52:53], v5, v2\nv_cmp_le_u32 s[54:55], v6, v2")
    a("v_mov_b32 v7, 0x0c0c0100\nv_mov_b32 v8, 0x01000c0c\nv_mov_b32 v9, 0x0c0c0302\nv_mov_b32 v10, 0x03020c0c\nv_mov_b32 v11, 0x0c0c0c0c")
    a("v_cndmask_b32 v7, v7, v8, s[50:51]\nv_cndmask_b32 v9, v9, v10, s[50:51]")
    a("v_cndmask_b32 v12, v7, v11, s[52:53]\nv_cndmask_b32 v13, v9, v11, s[54:55]\nv_cndmask_b32 v14, v11, v7, s[52:53]\nv_cndmask_b32 v15, v11, v9, s[54:55]")
    a(f"s_lshr_b32 s46, s3, 1\ns_or_b32 s46, s46, s{S_RB}\ns_cmp_eq_u32 s46, 0\ns_cselect_b64 s[56:57], -1, 0\nv_mov_b32 v16, 0xff800000")
    for base in [K(u) for u in range(9)] + [Q(u) for u in U]:
        for j in range(4): a(f"v_cvt_pk_bf16_f32 v{base + j}, v{base + 2 * j}, v{base + 2 * j + 1}")
    for u in U:
        a(mfma(P(u), vr(K(u - 1)), vr(Q(u)), "0"))
        a(mfma(C(u), vr(K(u)), vr(Q(u)), "0"))
    for n in range(2):
        b = L.ACC + 136 + 36 * n
        for j in range(18): a(f"v_cvt_pk_bf16_f32 v{b + j}, v{b + 2 * j}, v{b + 2 * j + 1}")
    sc = f2u(32 ** -0.5 * 1.4426950408889634)
    a(f"s_mov_b32 s46, {sc}")
    def each(fmt):
        for u in U:
            a(fmt.format(P0=P(u), P1=P(u) + 1, P2=P(u) + 2, P3=P(u) + 3, C0=C(u), C1=C(u) + 1, C2=C(u) + 2, C3=C(u) + 3))
    each("v_cndmask_b32 v{P0}, v{P0}, v{P1}, s[50:51]\nv_cndmask_b32 v{P2}, v{P2}, v{P3}, s[50:51]")
    a(f"v_cndmask_b32 v{P(1)}, v{P(1)}, v16, s[56:57]\nv_cndmask_b32 v{P(1) + 2}, v{P(1) + 2}, v16, s[56:57]")
    each("v_cndmask_b32 v{C0}, v{C0}, v{C1}, s[50:51]\nv_cndmask_b32 v{C2}, v{C2}, v{C3}, s[50:51]")
    each("v_cndmask_b32 v{P0}, v{P0}, v{C0}, s[52:53]\nv_cndmask_b32 v{P2}, v{P2}, v{C2}, s[54:55]")
    each("v_max_f32 v{P1}, v{P0}, v{P2}")
    def xreduce(op):
        each("v_mov_b32 v{P3}, v{P1}")
        each("v_permlane32_swap_b32 v{P1}, v{P3}")
        each(op + " v{P1}, v{P1}, v{P3}")
        each("v_mov_b32 v{P3}, v{P1}")
        each("v_permlane16_swap_b32 v{P1}, v{P3}")
        each(op + " v{P1}, v{P1}, v{P3}")
    xreduce("v_max_f32")
    each("v_sub_f32 v{P0}, v{P0}, v{P1}\nv_sub_f32 v{P2}, v{P2}, v{P1}")
    each("v_mul_f32 v{P0}, s46, v{P0}\nv_mul_f32 v{P2}, s46, v{P2}")
    each("v_exp_f32 v{P0}, v{P0}\nv_exp_f32 v{P2}, v{P2}")
    each("v_add_f32 v{P1}, v{P0}, v{P2}")
    xreduce("v_add_f32")
    each("v_rcp_f32 v{P1}, v{P1}")
    each("v_mul_f32 v{P0}, v{P0}, v{P1}\nv_mul_f32 v{P2}, v{P2}, v{P1}")
    each("v_cvt_pk_bf16_f32 v{C1}, v{P0}, v{P2}")
    each("v_perm_b32 v{P0}, v{C1}, v{C1}, v12\nv_perm_b32 v{P1}, v{C1}, v{C1}, v13\nv_perm_b32 v{P2}, v{C1}, v{C1}, v14\nv_perm_b32 v{P3}, v{C1}, v{C1}, v15")
    for u in U:
        a(mfma(C(u), vr(V(0, u - 1)), vr(P(u)), "0"))
        a(mfma(Q(u), vr(V(1, u - 1)), vr(P(u)), "0"))
    a("v_lshlrev_b32 v17, 4, v0")
    a(f"s_lshl_b32 s46, s{S_RB}, 3\ns_lshr_b32 s47, s3, 1\ns_lshl_b32 s47, s47, 2\ns_add_u32 s46, s46, s47\ns_mul_i32 s46, s46, {112 * 1024}")
    a(f"s_lshl_b32 s47, s{S_IDX}, 1\ns_and_b32 s48, s3, 1\ns_add_u32 s47, s47, s48\ns_add_u32 s49, s47, 80\ns_lshl_b32 s49, s49, 10\ns_add_u32 s46, s46, s49\ns_add_u32 s46, s46, {WS_Z1}")
    for tp in range(4):
        T = 18 + 8 * (tp % 3)
        for j in range(8): a(f"v_accvgpr_read_b32 v{T + j}, a{128 + 8 * tp + j}")
        for j in range(4): a(f"v_cvt_pk_bf16_f32 v{T + j}, v{T + 2 * j}, v{T + 2 * j + 1}")
        a(f"buffer_store_dwordx4 {vr(T)}, v17, {vr(SRD_WS, 4, 's')}, s46 offen")
        if tp < 3: a(f"s_add_u32 s46, s46, {112 * 1024}")
    a(f"s_lshl_b32 s46, s{S_RB}, 4\ns_lshr_b32 s48, s3, 1\ns_lshl_b32 s48, s48, 3\ns_add_u32 s46, s46, s48\ns_lshl_b32 s46, s46, 5\ns_add_u32 s46, s46, s47\ns_lshl_b32 s46, s46, 10\ns_add_u32 s46, s46, {WS_O}")
    for u in U:
        a(f"v_cvt_pk_bf16_f32 v{P(u)}, v{C(u)}, v{C(u) + 1}\nv_cvt_pk_bf16_f32 v{P(u) + 1}, v{C(u) + 2}, v{C(u) + 3}")
        a(f"v_cvt_pk_bf16_f32 v{P(u) + 2}, v{Q(u)}, v{Q(u) + 1}\nv_cvt_pk_bf16_f32 v{P(u) + 3}, v{Q(u) + 2}, v{Q(u) + 3}")
        a(f"buffer_store_dwordx4 {vr(P(u))}, v17, {vr(SRD_WS, 4, 's')}, s46 offen")
        if u < 8: a("s_add_u32 s46, s46, 32768")
    stamp(a, cfg, 2)
    write_stamps(a, cfg, 3, 0)
    a("s_endpgm")


def gen_z(a, cfg):
    a.label("L_k1_z")
    a.hist = []
    L = Loop(a, False, cfg)
    a(f"s_lshl_b32 s46, s{S_IDX}, 1\ns_add_u32 s52, s46, 28\ns_add_u32 s53, s46, 29\ns_mov_b32 s54, s{S_IDX}")
    a(f"s_add_u32 s55, s{S_IDX}, 40\ns_sub_u32 s56, s46, 12\ns_sub_u32 s57, s46, 11")
    a(f"s_cmp_lt_u32 s{S_IDX}, 12\ns_cselect_b32 s52, s52, s55\ns_cselect_b32 s53, s53, s56\ns_cselect_b32 s54, s54, s57")
    a("v_mul_u32_u24 v23, 7168, v23\nv_add_u32 v25, v25, v23")
    for c in range(3):
        a(f"s_lshl_b32 s46, s{52 + c}, 7\ns_add_u32 s46, s46, {4096 - c * 1024}\nv_add_u32 v{10 + c}, s46, v25")
    a(f"s_lshl_b32 s{S_M0X}, s3, 13\ns_mul_i32 s{S_M0W}, s3, 3072\ns_add_u32 s{S_M0W}, s{S_M0W}, {3 * XS_Z}")
    a("s_waitcnt lgkmcnt(0)")
    srd(a, SRD_X, 4, 0x400000)
    srd_biased(a, SRD_W, 36, 0x700000)
    for g in L.dma_x(0) + L.dma_x(1) + L.dma_w(0): a.emit(g)
    srd(a, SRD_WS, S_WSP, WS_SIZE)
    read_bases(a, False)
    gate_loads(a)
    a("s_mov_b32 s64, s52\ns_mov_b32 s65, s53\ns_mov_b32 s66, s54")
    def zero():
        for i in range(192): a(f"v_mov_b32 v{L.ACC + i}, 0")
    if cfg.get("codepf"): cfg["codepf"](a)
    L.run(zero)
    stamp(a, cfg, 1)
    Z = lambda n, u: L.ACC + 4 * (4 * n + u)
    a(f"s_mov_b32 s{S_C1}, {f2u(GELU_C1)}\ns_mov_b32 s{S_C1 + 1}, {f2u(GELU_C1)}\ns_mov_b32 s{S_ONE}, 1.0\ns_mov_b32 s{S_ONE + 1}, 1.0")
    a(f"v_mov_b32 v2, {f2u(GELU_C0)}\nv_mov_b32 v3, {f2u(GELU_C0)}\nv_lshlrev_b32 v1, 4, v0")
    SUM = lambda u: 4 + 4 * u
    tm = [20, 22, 24, 26, 28, 30, 32, 34]
    def gelu(ns, first):
        prs, st = [], []
        for n in ns:
            for h in range(2):
                for u in range(4):
                    prs.append(Z(n, u) + 2 * h)
                    st.append((SUM(u), SUM(u) + 2, first and n == ns[0] and h == 0))
        a.emit(gelu_pairs(prs, tm, S_C1, 2, S_ONE, st))
    isY = f"s_cmp_ge_u32 s{S_IDX}, 12"
    gelu([0, 1, 2, 3], True)
    a(f"{isY}\ns_cbranch_scc1 L_k1_g1")
    gelu([4, 5, 6, 7], False)
    a.label("L_k1_g1")
    a.fence(2)
    for u in range(4):
        a(f"v_add_f32 v{SUM(u)}, v{SUM(u)}, v{SUM(u) + 1}\nv_add_f32 v{SUM(u) + 2}, v{SUM(u) + 2}, v{SUM(u) + 3}")
    for u in range(4): a(f"v_permlane32_swap_b32 v{SUM(u)}, v{SUM(u) + 2}")
    for u in range(4): a(f"v_add_f32 v{SUM(u)}, v{SUM(u)}, v{SUM(u) + 2}")
    a(f"v_permlane16_swap_b32 v{SUM(0)}, v{SUM(1)}\nv_permlane16_swap_b32 v{SUM(2)}, v{SUM(3)}")
    a(f"v_add_f32 v20, v{SUM(0)}, v{SUM(1)}\nv_add_f32 v21, v{SUM(2)}, v{SUM(3)}")
    a(f"s_lshl_b32 s46, s{S_RB}, 2\ns_add_u32 s46, s46, s3\ns_lshl_b32 s46, s46, 13\ns_add_u32 s58, s46, {WS_ST}\ns_lshl_b32 s47, s{S_IDX}, 9\ns_add_u32 s47, s47, s58")
    a(f"v_lshlrev_b32 v22, 3, v0\nbuffer_store_dwordx2 v[20:21], v22, {vr(SRD_WS, 4, 's')}, s47 offen sc1")
    srd(a, SRD_AUX, S_DBG, 256)
    a(f"s_waitcnt vmcnt(0)\ns_barrier")
    a(f"s_lshl_b32 s46, s{S_RB}, 5\nv_mov_b32 v23, s46\nv_mov_b32 v24, 1\ns_cmp_lg_u32 s3, 0\ns_cbranch_scc1 L_k1_noadd")
    a(f"s_mov_b64 exec, 1\nbuffer_atomic_add v24, v23, {vr(SRD_AUX, 4, 's')}, 0 offen\ns_mov_b64 exec, -1")
    a.label("L_k1_noadd")
    stamp(a, cfg, 2)
    def z1(ns, sline):
        a(f"s_lshl_b32 s46, s{S_RB}, 3\ns_lshl_b32 s47, s3, 1\ns_add_u32 s46, s46, s47\ns_mul_i32 s46, s46, {112 * 1024}\ns_lshl_b32 s47, s{sline}, 12\ns_add_u32 s46, s46, s47")
        a(f"s_add_u32 s46, s46, {WS_Z1}\ns_add_u32 s47, s46, {112 * 1024}")
        for k, n in enumerate(ns):
            for tp in range(2):
                b = Z(n, 2 * tp)
                for j in range(4): a(f"v_cvt_pk_bf16_f32 v{b + j}, v{b + 2 * j}, v{b + 2 * j + 1}")
                a(f"buffer_store_dwordx4 {vr(b)}, v1, {vr(SRD_WS, 4, 's')}, s{46 + tp} offen offset:{1024 * k}")
    z1([8, 9, 10, 11], 66)
    a(f"s_cmp_lt_u32 s{S_IDX}, 12\ns_cbranch_scc1 L_k1_z1b")
    a.fence(2)
    z1([4, 5, 6, 7], 65)
    a.label("L_k1_z1b")
    a.fence(2)
    gate_finish(a, 26)
    a("s_mov_b32 s47, 0\ns_cmp_lg_u32 s3, 0\ns_cbranch_scc1 L_k1_polled")
    a.label("L_k1_poll")
    a(f"buffer_load_dword v24, v23, {vr(SRD_AUX, 4, 's')}, 0 offen sc1\ns_waitcnt vmcnt(0)\nv_readfirstlane_b32 s46, v24\ns_cmp_ge_u32 s46, 16\ns_cbranch_scc1 L_k1_polled\ns_sleep 1")
    a("s_add_u32 s47, s47, 1\ns_cmp_lt_u32 s47, 0x80000\ns_cbranch_scc1 L_k1_poll")
    a.label("L_k1_polled")
    a("s_barrier")
    stamp(a, cfg, 3)
    a("s_add_u32 s59, s58, 4096")
    for t in range(16):
        a(f"buffer_load_dwordx2 {vr(24 + 2 * t, 2)}, v22, {vr(SRD_WS, 4, 's')}, s{58 + t // 8} offen offset:{512 * (t % 8)} sc1")
    a("v_and_b32 v2, 3, v0\nv_bfe_u32 v3, v0, 2, 1\nv_lshl_or_b32 v2, v3, 3, v2\nv_bfe_u32 v3, v0, 3, 1\nv_lshl_or_b32 v2, v3, 2, v2\nv_bfe_u32 v3, v0, 4, 1\nv_lshl_or_b32 v2, v3, 4, v2")
    a("v_lshlrev_b32 v2, 5, v2\nv_lshrrev_b32 v3, 5, v0\nv_lshl_or_b32 v1, v3, 4, v2")
    a("s_waitcnt vmcnt(0)")
    for w in (8, 4, 2, 1):
        for j in range(w):
            a(f"v_pk_add_f32 {vr(24 + 2 * j, 2)}, {vr(24 + 2 * j, 2)}, {vr(24 + 2 * (j + w), 2)}")
    a("v_mov_b32 v26, v24\nv_mov_b32 v27, v25\nv_permlane32_swap_b32 v24, v26\nv_permlane32_swap_b32 v25, v27")
    inv = f2u(1.0 / 1792)
    a(f"v_mul_f32 v24, {inv}, v24\nv_mul_f32 v25, {inv}, v25\nv_mul_f32 v26, {inv}, v26\nv_mul_f32 v27, {inv}, v27")
    a(f"v_fma_f32 v26, -v24, v24, v26\nv_fma_f32 v27, -v25, v25, v27\nv_add_f32 v26, {f2u(1e-5)}, v26\nv_add_f32 v27, {f2u(1e-5)}, v27")
    a("v_rsq_f32 v4, v26\nv_rsq_f32 v8, v27\nv_mul_f32 v5, -v24, v4\nv_mul_f32 v9, -v25, v8")
    a("v_mov_b32 v6, v4\nv_mov_b32 v7, v5\nv_mov_b32 v10, v8\nv_mov_b32 v11, v9")
    a("v_permlane16_swap_b32 v4, v6\nv_permlane16_swap_b32 v5, v7\nv_permlane16_swap_b32 v8, v10\nv_permlane16_swap_b32 v9, v11")
    def z2(ns, sline):
        a(f"s_lshl_b32 s46, s{S_RB}, 3\ns_lshl_b32 s47, s3, 1\ns_add_u32 s46, s46, s47\ns_mul_i32 s46, s46, {112 * 1024}\ns_sub_u32 s47, s{sline}, 28\ns_lshl_b32 s47, s47, 12\ns_add_u32 s46, s46, s47")
        if WS_Z2N: a(f"s_add_u32 s46, s46, {WS_Z2N}")
        a(f"s_add_u32 s47, s46, {112 * 1024}")
        for k, n in enumerate(ns):
            for u in range(4):
                for h in range(2):
                    p = vr(Z(n, u) + 2 * h, 2)
                    s_ = vr(4 + 2 * u, 2)
                    a(f"v_pk_fma_f32 {p}, {p}, {s_}, {s_} op_sel:[0,0,1] op_sel_hi:[1,0,1]")
            for tp in range(2):
                b = Z(n, 2 * tp)
                for j in range(4): a(f"v_cvt_pk_bf16_f32 v{b + j}, v{b + 2 * j}, v{b + 2 * j + 1}")
            for tp in range(2):
                b = Z(n, 2 * tp)
                a(f"v_permlane16_swap_b32 v{b}, v{b + 2}\nv_permlane16_swap_b32 v{b + 1}, v{b + 3}")
            for tp in range(2):
                a(f"buffer_store_dwordx4 {vr(Z(n, 2 * tp))}, v1, {vr(SRD_WS, 4, 's')}, s{46 + tp} offen offset:{1024 * k}")
    z2([0, 1, 2, 3], 64)
    a(f"{isY}\ns_cbranch_scc1 L_k1_z2b")
    z2([4, 5, 6, 7], 65)
    a.label("L_k1_z2b")
    a.fence(2)
    write_stamps(a, cfg, 4, 0)
    a.label("L_k1_end")
    a("s_endpgm")


def gen_k1(cfg):
    a = Asm()
    common_prologue(a, cfg)
    gen_q(a, cfg)
    gen_z(a, cfg)
    return head("k1_kernel") + a.text() + "L_k1_codeend:\n", desc("k1_kernel", 512, 256)
```

```python
WS_Z2N = 0x0000000
WS_Z1  = 0x0700000
WS_O   = 0x0E00000
WS_Y   = 0x1200000
WS_G   = 0x1900000
WS_ST  = 0x1910000
WS_SIZE = 0x1A00000
ARG = dict(x=0, wqkv=8, wo=16, w_in=32, w_sp=40, b_sp=48, w_out=56, gate=64, out=72, dbg=80, ws=88)

def srd(a, d, base, size):
    a(f"s_mov_b32 s{d}, s{base}\ns_mov_b32 s{d+1}, s{base+1}\ns_mov_b32 s{d+2}, {hex(size)}\ns_mov_b32 s{d+3}, 0x20000")

def srd_biased(a, d, base, size, bias=4096):
    a(f"s_sub_u32 s{d}, s{base}, {bias}\ns_subb_u32 s{d+1}, s{base+1}, 0\ns_mov_b32 s{d+2}, {hex(size + bias)}\ns_mov_b32 s{d+3}, 0x20000")

def vr(b, n=4, k="v"):
    return f"{k}[{b}:{b + n - 1}]"

def mfma(d, A, B, C=None, dk="v", k16=False):
    op = "v_mfma_f32_16x16x16_bf16" if k16 else "v_mfma_f32_16x16x32_bf16"
    D = vr(d, 4, dk)
    return f"{op} {D}, {A}, {B}, {D if C is None else C}"

GELU_C0 = -2.302208198144325
GELU_C1 = GELU_C0 * 0.044715
import struct
def f2u(x):
    return "0x%08x" % struct.unpack("<I", struct.pack("<f", x))[0]

def gelu_pairs(pairs, tmps, sC1, vC0, sOne, stats=None):
    out = []
    nb = len(tmps)
    for b0 in range(0, len(pairs), nb):
        ps = pairs[b0:b0 + nb]
        P = [vr(p, 2) for p in ps]
        T = [vr(t, 2) for t in tmps[:len(ps)]]
        out += [f"v_pk_mul_f32 {t}, {p}, {p}" for p, t in zip(P, T)]
        out += [f"v_pk_fma_f32 {t}, {t}, {vr(sC1, 2, 's')}, {vr(vC0, 2)}" for t in T]
        out += [f"v_pk_mul_f32 {t}, {t}, {p}" for p, t in zip(P, T)]
        for t in tmps[:len(ps)]:
            out += [f"v_exp_f32 v{t}, v{t}", f"v_exp_f32 v{t+1}, v{t+1}"]
        out += [f"v_pk_add_f32 {t}, {t}, {vr(sOne, 2, 's')}" for t in T]
        for t in tmps[:len(ps)]:
            out += [f"v_rcp_f32 v{t}, v{t}", f"v_rcp_f32 v{t+1}, v{t+1}"]
        out += [f"v_pk_mul_f32 {p}, {p}, {t}" for p, t in zip(P, T)]
        if stats:
            for p, (s, q, first) in zip(P, stats[b0:b0 + nb]):
                if first:
                    out.append(f"v_pk_mul_f32 {vr(q, 2)}, {p}, {p}")
                    out.append(f"v_pk_mul_f32 {vr(s, 2)}, {p}, {vr(sOne, 2, 's')}")
                else:
                    out.append(f"v_pk_fma_f32 {vr(q, 2)}, {p}, {p}, {vr(q, 2)}")
                    out.append(f"v_pk_add_f32 {vr(s, 2)}, {vr(s, 2)}, {p}")
    return out

def code_prefetch(a, start, end, nbytes_max, sbase, vtmp, vdst, slice_sgpr, nslices, dry=False):
    per = -(-nbytes_max // nslices // 128) * 128
    assert per <= 64 * 128 and sbase % 4 == 0
    lab = a.newlabel("L_pc")
    a(f"s_getpc_b64 {vr(sbase, 2, 's')}")
    a.label(lab)
    a(f"s_mov_b32 s{sbase+4}, s{sbase}\ns_mov_b32 s{sbase+5}, s{sbase+1}")
    a(f"s_sub_u32 s{sbase}, s{sbase}, {lab}-{start}\ns_subb_u32 s{sbase+1}, s{sbase+1}, 0")
    a(f"s_mov_b32 s{sbase+2}, {end}-{start}\ns_mov_b32 s{sbase+3}, 0x20000")
    a(f"v_lshlrev_b32 v{vtmp}, 7, v0\nv_min_u32 v{vtmp}, {per - 128}, v{vtmp}")
    a(f"s_mul_i32 s{sbase+4}, s{slice_sgpr}, {per}\nv_add_u32 v{vtmp}, s{sbase+4}, v{vtmp}")
    if not dry:
        a(f"buffer_load_dword v{vdst}, v{vtmp}, {vr(sbase, 4, 's')}, 0 offen", tag="pf")


TOUCH = {"sp": (82, 0x800000, 8192), "wo": (84, 0x200000, 2048), "wout": (86, 0x380000, 3584)}
def touch_ptrs(a):
    a("s_load_dwordx2 s[82:83], s[0:1], 40\ns_load_dwordx2 s[84:85], s[0:1], 16\ns_load_dwordx2 s[86:87], s[0:1], 56")

def touch(kind, vaddr, vdst):
    half = None
    if kind[-1] in "01":
        kind, half = kind[:-1], int(kind[-1])
    base, size, per = TOUCH[kind]
    n = per if half is None else per // 2
    out = [f"s_mov_b32 s96, s{base}\ns_mov_b32 s97, s{base + 1}\ns_mov_b32 s98, {hex(size)}\ns_mov_b32 s99, 0x20000",
           f"s_lshl_b32 s100, s2, 2\ns_add_u32 s100, s100, s3\ns_mul_i32 s100, s100, {per}" + (f"\ns_add_u32 s100, s100, {n}" if half else ""),
           f"v_lshlrev_b32 v{vaddr}, 7, v0"]
    lanes = n // 128
    if lanes < 64:
        out.append(f"s_mov_b64 exec, {hex((1 << lanes) - 1)}" if lanes < 32 else f"s_mov_b32 exec_hi, {hex((1 << (lanes - 32)) - 1)}")
    out.append(f"buffer_load_dword v{vdst}, v{vaddr}, s[96:99], s100 offen")
    if lanes < 64:
        out.append("s_mov_b64 exec, -1")
    return out
```

```python
from asm import *
from common import *

XS_Q, XS_Z = 34816, 32768
WS_Q, WS_Z = 14336, 12288
LDS_K1 = 3 * XS_Q + 4 * WS_Q
S_WAVE = 3
SRD_X, SRD_W, SRD_W2, SRD_WS = 8, 12, 16, 20
S_XS, S_WOFF, S_W2OFF, S_XD, S_XR, S_M0X, S_M0W = 24, 25, 26, 27, 28, 29, 30
S_LO = 32
S_CNT, S_RB, S_IDX, S_M0H = 34, 35, 44, 45
S_DBG, S_WSP = 40, 42
S_T = 46
S_C1, S_ONE = 60, 62
SRD_AUX = 4
GATE_A = 160


def common_prologue(a, cfg):
    a("s_cmp_ge_u32 s2, 256\ns_cbranch_scc1 L_k1_end")
    a("s_load_dwordx4 s[4:7], s[0:1], 0\ns_load_dwordx2 s[36:37], s[0:1], 32\ns_load_dwordx2 s[38:39], s[0:1], 64\ns_load_dwordx4 s[40:43], s[0:1], 80")
    if cfg.get("wpf"):
        touch_ptrs(a)
    if cfg.get("stamp"):
        a("s_memrealtime s[70:71]\ns_memtime s[72:73]")
    a("v_lshrrev_b32 v1, 6, v0\nv_and_b32 v0, 63, v0\nv_readfirstlane_b32 s3, v1")
    a(f"s_and_b32 s46, s2, 7\ns_lshr_b32 s47, s2, 3\ns_and_b32 s{S_RB}, s47, 7\ns_lshr_b32 s47, s47, 3")
    a(f"s_and_b32 s48, s47, 1\ns_lshl_b32 s46, s46, 1\ns_add_u32 s{S_IDX}, s46, s48")
    a(f"s_mov_b32 s{S_LO}, -1\ns_mov_b32 s{S_LO+1}, 0")
    a("v_lshrrev_b32 v20, 3, v0\nv_and_b32 v21, 7, v0\nv_lshrrev_b32 v22, 4, v0")
    a(f"s_lshl_b32 s48, s{S_RB}, 8\ns_lshl_b32 s49, s3, 6\ns_add_u32 s48, s48, s49\nv_add_u32 v23, s48, v20\nv_lshlrev_b32 v23, 11, v23")
    a("v_xor_b32 v24, v21, v22\nv_xor_b32 v25, 4, v24\nv_lshl_add_u32 v24, v24, 4, v23\nv_lshl_add_u32 v25, v25, 4, v23")
    for j in range(8):
        a(f"v_add_u32 v{2 + j}, {j * 16384 - (j % 4) * 1024}, v{24 + (j & 1)}")
    a("s_lshl_b32 s49, s3, 3\nv_add_u32 v23, s49, v20")
    a("s_and_b32 s50, s3, 1\ns_lshl_b32 s50, s50, 1\nv_and_b32 v24, 1, v22\nv_or_b32 v24, s50, v24")
    a("v_lshrrev_b32 v25, 1, v21\nv_xor_b32 v25, v25, v24\nv_lshlrev_b32 v25, 5, v25\nv_and_b32 v26, 1, v0\nv_lshl_add_u32 v25, v26, 4, v25")
    a(f"s_mov_b32 s{S_XS}, 0\ns_mov_b32 s{S_WOFF}, 0\ns_mov_b32 s{S_W2OFF}, 0\ns_mov_b32 s{S_XD}, 0\ns_mov_b32 s{S_XR}, 0")
    a("s_cmp_ge_u32 s47, 2\ns_cbranch_scc1 L_k1_z")


def read_bases(a, q):
    XS = XS_Q if q else XS_Z
    WB = 3 * XS
    blk = 3584 if q else 3072
    a("v_and_b32 v20, 15, v0\nv_lshrrev_b32 v21, 4, v0\nv_lshrrev_b32 v22, 1, v20\nv_xor_b32 v22, v22, v21")
    a("v_lshlrev_b32 v22, 4, v22\nv_lshl_add_u32 v22, v20, 7, v22")
    if q:
        a("s_lshr_b32 s49, s3, 1\ns_lshl_b32 s49, s49, 14")
    else:
        a("s_lshl_b32 s49, s3, 13")
    a("v_add_u32 v14, s49, v22\nv_xor_b32 v15, 64, v14\nv_mov_b32 v16, v14\nv_mov_b32 v17, v15")
    a("v_lshrrev_b32 v20, 2, v0\nv_and_b32 v20, 3, v20\nv_and_b32 v22, 3, v0")
    a("v_lshrrev_b32 v23, 1, v20\nv_and_b32 v24, 1, v21\nv_lshl_or_b32 v23, v24, 1, v23")
    a(f"v_mul_u32_u24 v25, {blk}, v21\nv_lshl_add_u32 v26, v20, 7, v25\nv_lshl_add_u32 v26, v22, 3, v26\nv_add_u32 v26, {WB}, v26")
    if q:
        a("s_and_b32 s49, s3, 1\ns_lshl_b32 s50, s49, 1\nv_xor_b32 v30, s50, v23\nv_lshl_add_u32 v18, v30, 5, v26\nv_xor_b32 v30, 1, v30\nv_lshl_add_u32 v19, v30, 5, v26")
        a(f"v_lshl_add_u32 v26, v20, 6, v25\nv_lshl_add_u32 v26, v22, 3, v26\nv_add_u32 v26, {WB + 3072}, v26")
        a("v_xor_b32 v30, s49, v24\nv_lshl_add_u32 v28, v30, 5, v26")
    else:
        for j, r in enumerate((18, 19, 28, 29)):
            a(f"v_xor_b32 v30, {j}, v23\nv_lshl_add_u32 v{r}, v30, 5, v26")


def gate_loads(a):
    a("s_lshl_b32 s49, s2, 3\ns_lshl_b32 s50, s3, 1\ns_add_u32 s49, s49, s50\ns_lshl_b32 s49, s49, 11\nv_lshlrev_b32 v20, 4, v0")
    a("s_add_u32 s50, s49, 2048")
    for t, so in ((0, "s49"), (1, "s50")):
        for h in range(2):
            r = GATE_A + 8 * t + 4 * h
            a(f"buffer_load_dwordx4 {vr(r, 4, 'a')}, v20, {vr(SRD_X, 4, 's')}, {so} offen offset:{1024 * h}", tag="gate")
    srd(a, SRD_AUX, 38, 2048)
    for h in range(2):
        r = GATE_A + 16 + 4 * h
        a(f"buffer_load_dwordx4 {vr(r, 4, 'a')}, v20, {vr(SRD_AUX, 4, 's')}, 0 offen offset:{1024 * h}", tag="gate")


def gate_finish(a, T):
    for i in range(24):
        a(f"v_accvgpr_read_b32 v{T + i}, a{GATE_A + i}")
    s0, s1 = T + 24, T + 25
    a(f"v_mov_b32 v{s0}, 0\nv_mov_b32 v{s1}, 0")
    for i in range(8):
        a(f"v_dot2c_f32_bf16 v{s0}, v{T + i}, v{T + 16 + i}\nv_dot2c_f32_bf16 v{s1}, v{T + 8 + i}, v{T + 16 + i}")
    a("s_nop 2")
    t = T + 26
    a(f"v_permlane32_swap_b32 v{s0}, v{s1}\nv_add_f32 v{s0}, v{s0}, v{s1}\nv_mov_b32 v{t}, v{s0}")
    a(f"v_permlane16_swap_b32 v{s0}, v{t}\nv_add_f32 v{s0}, v{s0}, v{t}")
    for sh in (8, 4, 2, 1):
        a(f"v_add_f32_dpp v{s0}, v{s0}, v{s0} row_ror:{sh} row_mask:0xf bank_mask:0xf")
    a(f"v_mul_f32 v{s0}, {f2u(-1.4426950408889634)}, v{s0}\nv_exp_f32 v{s0}, v{s0}\nv_add_f32 v{s0}, 1.0, v{s0}\nv_rcp_f32 v{s0}, v{s0}")
    a(f"s_lshl_b32 s49, s2, 5\ns_lshl_b32 s50, s3, 3\ns_add_u32 s49, s49, s50\ns_add_u32 s49, s49, {WS_G}")
    a(f"v_lshrrev_b32 v{t}, 3, v0\nv_and_b32 v{s1}, 31, v0\nv_cmp_eq_u32 vcc, 0, v{s1}")
    a("s_and_saveexec_b64 s[50:51], vcc")
    a(f"buffer_store_dword v{s0}, v{t}, {vr(SRD_WS, 4, 's')}, s49 offen")
    a("s_mov_b64 exec, s[50:51]")


class Loop:
    def __init__(self, a, q, cfg):
        self.a, self.q, self.cfg = a, q, cfg
        self.XS = XS_Q if q else XS_Z
        self.WS = WS_Q if q else WS_Z
        self.WP = 6144 if q else 7168
        self.nx, self.nw = (9, 7) if q else (4, 12)
        self.ACC = 48 if q else 64

    def xf(self, p, u): return 64 * p + 4 * u
    def wf(self, p, n): return 64 * p + 4 * self.nx + 4 * n

    def acc(self, n, u):
        if not self.q:
            return self.ACC + 4 * (4 * n + u), "v"
        if n < 2:
            return self.ACC + 8 * (u - 1) + 4 * n, "v"
        if n < 4:
            return self.ACC + 64 + 8 * u + 4 * (n - 2), "v"
        if n < 6:
            return self.ACC + 136 + 36 * (n - 4) + 4 * u, "v"
        return 128 + 4 * (u - 1), "a"

    def dma_w(self, slot):
        ax = self.cfg.get("auxw", "")
        g = [[f"s_add_u32 m0, s{S_M0W}, {slot * self.WS}", f"buffer_load_dwordx4 v10, {vr(SRD_W, 4, 's')}, s{S_WOFF} offen {ax} lds"]]
        g.append([f"buffer_load_dwordx4 v11, {vr(SRD_W, 4, 's')}, s{S_WOFF} offen offset:1024 {ax} lds"])
        g.append([f"buffer_load_dwordx4 v12, {vr(SRD_W, 4, 's')}, s{S_WOFF} offen offset:2048 {ax} lds", f"s_add_u32 s{S_WOFF}, s{S_WOFF}, {32 * self.WP}"])
        if self.q:
            g.append([f"s_mov_b64 exec, {vr(S_LO, 2, 's')}", f"buffer_load_dwordx4 v13, {vr(SRD_W2, 4, 's')}, s{S_W2OFF} offen offset:3072 {ax} lds",
                      "s_mov_b64 exec, -1", f"s_add_u32 s{S_W2OFF}, s{S_W2OFF}, {32 * 7168}"])
        return g

    def dma_x(self, h):
        ax = self.cfg.get("auxx", "")
        g = []
        for j in range(4):
            pre = []
            if j == 0:
                pre = [f"s_add_u32 m0, s{S_M0X}, s{S_XD}"] + ([f"s_add_u32 m0, m0, 4096"] if h else [])
            g.append(pre + [f"buffer_load_dwordx4 v{2 + 4 * h + j}, {vr(SRD_X, 4, 's')}, s{S_XS} offen offset:{j * 1024} {ax} lds"])
        if h == 1:
            if self.q:
                g.append([f"s_add_u32 m0, s{S_M0H}, s{S_XD}", f"s_mov_b64 exec, {vr(S_LO, 2, 's')}",
                          f"buffer_load_dwordx4 v1, {vr(SRD_X, 4, 's')}, s{S_XS} offen {ax} lds", "s_mov_b64 exec, -1"])
            g[-1] += [f"s_add_u32 s{S_XS}, s{S_XS}, 128", f"s_add_u32 s{S_XD}, s{S_XD}, {self.XS}",
                      f"s_cmp_eq_u32 s{S_XD}, {3 * self.XS}", f"s_cselect_b32 s{S_XD}, 0, s{S_XD}"]
        return g

    def n_w(self): return 4 if self.q else 3
    def n_x(self, h): return 4 + (1 if (h and self.q) else 0)

    def reads(self, i):
        p = i & 1
        g = [[f"ds_read_b128 {vr(self.xf(p, u), 4, 'a')}, v{16 + p} offset:{u * 2048}"] for u in range(self.nx)]
        off = (i % 4) * self.WS
        for n in range(self.nw):
            r = self.wf(p, n)
            st = 512
            if self.q:
                v, o = (18 + (n & 1), off + (n >> 1) * 1024) if n < 6 else (28, off)
                if n == 6: st = 256
            else:
                v, o = (18, 19, 28, 29)[n % 4], off + (n // 4) * 1024
            g.append([f"ds_read_b64_tr_b16 {vr(r, 2, 'a')}, v{v} offset:{o}"])
            g.append([f"ds_read_b64_tr_b16 {vr(r + 2, 2, 'a')}, v{v} offset:{o + st}"])
        return g

    def mfmas(self, i):
        p = i & 1
        out = []
        if self.q:
            for u in range(9):
                ns = [2, 3, 4, 5] if u == 0 else list(range(7))
                if u & 1: ns = ns[::-1]
                for n in ns:
                    d, k = self.acc(n, u)
                    W, X = vr(self.wf(p, n), 4, "a"), vr(self.xf(p, u), 4, "a")
                    out.append(mfma(d, X, W, dk=k) if n in (4, 5) else mfma(d, W, X, dk=k))
        else:
            for n in range(12):
                for u in (range(4) if n % 2 == 0 else range(3, -1, -1)):
                    d, k = self.acc(n, u)
                    out.append(mfma(d, vr(self.wf(p, n), 4, "a"), vr(self.xf(p, u), 4, "a")))
        return out

    def touch(self, kind):
        return touch(kind, self.ACC - 2, self.ACC - 1)

    def step(self, i, dw, dx, wait, last=False, touches=()):
        a = self.a
        a(f"s_waitcnt vmcnt({wait}) lgkmcnt(0)\ns_barrier")
        m = self.mfmas(i)
        n = len(m)
        rd = [] if last else self.reads(i + 1)
        if rd and (i & 1):
            XS = self.XS
            rd = [[f"s_add_u32 s{S_XR}, s{S_XR}, {XS}", f"s_cmp_eq_u32 s{S_XR}, {3 * XS}", f"s_cselect_b32 s{S_XR}, 0, s{S_XR}"],
                  [f"v_add_u32 v16, s{S_XR}, v14", f"v_add_u32 v17, s{S_XR}, v15"]] + rd
        dm = (self.dma_w(i % 4) if dw else []) + (self.dma_x(1 - (i & 1)) if dx else [])
        specs = []
        if rd: specs.append((rd, 0, int(n * 0.8)))
        if dm: specs.append((dm, 0, int(n * 0.9)))
        if touches: specs.append(([self.touch(k) for k in touches], int(n * 0.92), n - 1))
        a.emit(spread2(m, specs))

    def run(self, zero_acc):
        a = self.a
        nd = lambda t: (self.n_w() if t <= 27 else 0) + (self.n_x(1 - (t & 1)) if t <= 26 else 0)
        for g in self.dma_w(1) + self.dma_x(0) + self.dma_w(2) + self.dma_x(1) + self.dma_w(3) + self.dma_x(0):
            a.emit(g)
        zero_acc()
        a(f"s_waitcnt vmcnt({nd(-3) + nd(-2) + nd(-1)})\ns_barrier")
        stamp(a, self.cfg, 0)
        for g in self.reads(0): a.emit(g)
        lab = "L_k1_loop_q" if self.q else "L_k1_loop_z"
        a(f"s_mov_b32 s{S_CNT}, 0")
        a.fence(2)
        a.label(lab)
        for i in range(4):
            self.step(i, True, True, nd(i - 1) + nd(i - 2))
        a(f"s_add_u32 s{S_CNT}, s{S_CNT}, 1\ns_cmp_lt_u32 s{S_CNT}, 6\ns_cbranch_scc1 {lab}")
        wpf = self.cfg.get("wpf") or {}
        nt = lambda t: len(wpf.get(str(t), ()))
        for i in range(24, 32):
            self.step(i, i <= 27, i <= 26, nd(i - 1) + nd(i - 2) + nt(i - 1) + nt(i - 2), last=(i == 31), touches=wpf.get(str(i), ()))


def stamp(a, cfg, k):
    if cfg.get("stamp"):
        a(f"s_memtime s[{74 + 2 * k}:{75 + 2 * k}]")


def write_stamps(a, cfg, n, slot, wsreg=S_WSP):
    if not cfg.get("stamp"):
        return
    a("s_memtime s[90:91]\ns_memrealtime s[92:93]\ns_waitcnt lgkmcnt(0)")
    vals = [70, 92] + [74 + 2 * k for k in range(n)] + [90]
    for j, s in enumerate(vals):
        if j >= 2: a(f"s_sub_u32 s{s}, s{s}, s72")
        a(f"v_mov_b32 v{8 + j}, s{s}")
    a(f"s_lshl_b32 s46, s2, 2\ns_add_u32 s46, s46, s3\ns_lshl_b32 s46, s46, 5\ns_add_u32 s46, s46, {0x1B00000 + slot * 0x10000}\nv_mov_b32 v1, s46")
    a("v_cmp_eq_u32 vcc, 0, v0\ns_and_saveexec_b64 s[50:51], vcc")
    srd(a, 96, wsreg, 0x1C00000)
    a("buffer_store_dwordx4 v[8:11], v1, s[96:99], 0 offen\nbuffer_store_dwordx4 v[12:15], v1, s[96:99], 0 offen offset:16")
    a("s_mov_b64 exec, s[50:51]")


def gen_q(a, cfg):
    L = Loop(a, True, cfg)
    a(f"v_mul_u32_u24 v23, 6144, v23\nv_add_u32 v25, v25, v23\ns_lshl_b32 s48, s{S_IDX}, 7\nv_add_u32 v25, s48, v25")
    for c in range(3):
        a(f"v_add_u32 v{10 + c}, {c * 2048 - c * 1024}, v25")
    a("v_lshrrev_b32 v23, 2, v0\nv_and_b32 v23, 7, v23\nv_add_u32 v23, s49, v23\nv_mul_u32_u24 v23, 7168, v23")
    a("s_and_b32 s50, s3, 1\nv_lshrrev_b32 v24, 1, v0\nv_and_b32 v24, 1, v24\nv_xor_b32 v24, s50, v24\nv_lshlrev_b32 v24, 5, v24\nv_lshl_add_u32 v24, v26, 4, v24")
    a(f"s_lshl_b32 s48, s{S_IDX}, 6\ns_add_u32 s48, s48, {2560 + 4096 - 3072}\nv_add_u32 v24, v24, v23\nv_add_u32 v13, s48, v24")
    a(f"s_lshl_b32 s48, s{S_RB}, 8\ns_max_u32 s48, s48, 16\ns_sub_u32 s48, s48, 16\ns_lshl_b32 s50, s3, 2\ns_add_u32 s48, s48, s50")
    a("v_add_u32 v23, s48, v20\nv_lshlrev_b32 v23, 11, v23\ns_lshl_b32 s50, s3, 1\nv_add_u32 v24, s50, v22\nv_and_b32 v24, 7, v24\nv_xor_b32 v24, v24, v21\nv_lshl_add_u32 v1, v24, 4, v23")
    a(f"s_lshl_b32 s{S_M0X}, s3, 13\ns_add_u32 s{S_M0X}, s{S_M0X}, 2048\ns_lshl_b32 s{S_M0H}, s3, 9")
    a(f"s_mul_i32 s{S_M0W}, s3, 3584\ns_add_u32 s{S_M0W}, s{S_M0W}, {3 * XS_Q}")
    a("s_waitcnt lgkmcnt(0)")
    srd(a, SRD_X, 4, 0x400000)
    srd(a, SRD_W, 6, 0x600000)
    srd_biased(a, SRD_W2, 36, 0x700000)
    for g in L.dma_x(0) + L.dma_x(1) + L.dma_w(0): a.emit(g)
    srd(a, SRD_WS, S_WSP, WS_SIZE)
    read_bases(a, True)
    gate_loads(a)
    def zero():
        for i in range(208): a(f"v_mov_b32 v{L.ACC + i}, 0")
        for i in range(32): a(f"v_accvgpr_write_b32 a{128 + i}, 0")
    if cfg.get("codepf"): cfg["codepf"](a)
    L.run(zero)
    stamp(a, cfg, 1)
    gate_finish(a, 2)
    Q = lambda u: L.ACC + 8 * (u - 1)
    K = lambda u: L.ACC + 64 + 8 * u
    V = lambda n, u: L.ACC + 136 + 36 * n + 2 * u
    P = lambda u: Q(u) + 4
    C = lambda u: K(u) + 4
    U = range(1, 9)
    a("v_and_b32 v2, 15, v0\nv_lshrrev_b32 v3, 4, v0\nv_and_b32 v4, 1, v0\nv_lshl_add_u32 v5, v3, 2, v4\nv_add_u32 v6, 2, v5")
    a("v_cmp_eq_u32 s[50:51], 1, v4\nv_cmp_le_u32 s[52:53], v5, v2\nv_cmp_le_u32 s[54:55], v6, v2")
    a("v_mov_b32 v7, 0x0c0c0100\nv_mov_b32 v8, 0x01000c0c\nv_mov_b32 v9, 0x0c0c0302\nv_mov_b32 v10, 0x03020c0c\nv_mov_b32 v11, 0x0c0c0c0c")
    a("v_cndmask_b32 v7, v7, v8, s[50:51]\nv_cndmask_b32 v9, v9, v10, s[50:51]")
    a("v_cndmask_b32 v12, v7, v11, s[52:53]\nv_cndmask_b32 v13, v9, v11, s[54:55]\nv_cndmask_b32 v14, v11, v7, s[52:53]\nv_cndmask_b32 v15, v11, v9, s[54:55]")
    a(f"s_lshr_b32 s46, s3, 1\ns_or_b32 s46, s46, s{S_RB}\ns_cmp_eq_u32 s46, 0\ns_cselect_b64 s[56:57], -1, 0\nv_mov_b32 v16, 0xff800000")
    for base in [K(u) for u in range(9)] + [Q(u) for u in U]:
        for j in range(4): a(f"v_cvt_pk_bf16_f32 v{base + j}, v{base + 2 * j}, v{base + 2 * j + 1}")
    for u in U:
        a(mfma(P(u), vr(K(u - 1)), vr(Q(u)), "0"))
        a(mfma(C(u), vr(K(u)), vr(Q(u)), "0"))
    for n in range(2):
        b = L.ACC + 136 + 36 * n
        for j in range(18): a(f"v_cvt_pk_bf16_f32 v{b + j}, v{b + 2 * j}, v{b + 2 * j + 1}")
    sc = f2u(32 ** -0.5 * 1.4426950408889634)
    a(f"s_mov_b32 s46, {sc}")
    def each(fmt):
        for u in U:
            a(fmt.format(P0=P(u), P1=P(u) + 1, P2=P(u) + 2, P3=P(u) + 3, C0=C(u), C1=C(u) + 1, C2=C(u) + 2, C3=C(u) + 3))
    each("v_cndmask_b32 v{P0}, v{P0}, v{P1}, s[50:51]\nv_cndmask_b32 v{P2}, v{P2}, v{P3}, s[50:51]")
    a(f"v_cndmask_b32 v{P(1)}, v{P(1)}, v16, s[56:57]\nv_cndmask_b32 v{P(1) + 2}, v{P(1) + 2}, v16, s[56:57]")
    each("v_cndmask_b32 v{C0}, v{C0}, v{C1}, s[50:51]\nv_cndmask_b32 v{C2}, v{C2}, v{C3}, s[50:51]")
    each("v_cndmask_b32 v{P0}, v{P0}, v{C0}, s[52:53]\nv_cndmask_b32 v{P2}, v{P2}, v{C2}, s[54:55]")
    each("v_max_f32 v{P1}, v{P0}, v{P2}")
    def xreduce(op):
        each("v_mov_b32 v{P3}, v{P1}")
        each("v_permlane32_swap_b32 v{P1}, v{P3}")
        each(op + " v{P1}, v{P1}, v{P3}")
        each("v_mov_b32 v{P3}, v{P1}")
        each("v_permlane16_swap_b32 v{P1}, v{P3}")
        each(op + " v{P1}, v{P1}, v{P3}")
    xreduce("v_max_f32")
    each("v_sub_f32 v{P0}, v{P0}, v{P1}\nv_sub_f32 v{P2}, v{P2}, v{P1}")
    each("v_mul_f32 v{P0}, s46, v{P0}\nv_mul_f32 v{P2}, s46, v{P2}")
    each("v_exp_f32 v{P0}, v{P0}\nv_exp_f32 v{P2}, v{P2}")
    each("v_add_f32 v{P1}, v{P0}, v{P2}")
    xreduce("v_add_f32")
    each("v_rcp_f32 v{P1}, v{P1}")
    each("v_mul_f32 v{P0}, v{P0}, v{P1}\nv_mul_f32 v{P2}, v{P2}, v{P1}")
    each("v_cvt_pk_bf16_f32 v{C1}, v{P0}, v{P2}")
    each("v_perm_b32 v{P0}, v{C1}, v{C1}, v12\nv_perm_b32 v{P1}, v{C1}, v{C1}, v13\nv_perm_b32 v{P2}, v{C1}, v{C1}, v14\nv_perm_b32 v{P3}, v{C1}, v{C1}, v15")
    for u in U:
        a(mfma(C(u), vr(V(0, u - 1)), vr(P(u)), "0"))
        a(mfma(Q(u), vr(V(1, u - 1)), vr(P(u)), "0"))
    a("v_lshlrev_b32 v17, 4, v0")
    a(f"s_lshl_b32 s46, s{S_RB}, 3\ns_lshr_b32 s47, s3, 1\ns_lshl_b32 s47, s47, 2\ns_add_u32 s46, s46, s47\ns_mul_i32 s46, s46, {112 * 1024}")
    a(f"s_lshl_b32 s47, s{S_IDX}, 1\ns_and_b32 s48, s3, 1\ns_add_u32 s47, s47, s48\ns_add_u32 s49, s47, 80\ns_lshl_b32 s49, s49, 10\ns_add_u32 s46, s46, s49\ns_add_u32 s46, s46, {WS_Z1}")
    for tp in range(4):
        T = 18 + 8 * (tp % 3)
        for j in range(8): a(f"v_accvgpr_read_b32 v{T + j}, a{128 + 8 * tp + j}")
        for j in range(4): a(f"v_cvt_pk_bf16_f32 v{T + j}, v{T + 2 * j}, v{T + 2 * j + 1}")
        a(f"buffer_store_dwordx4 {vr(T)}, v17, {vr(SRD_WS, 4, 's')}, s46 offen")
        if tp < 3: a(f"s_add_u32 s46, s46, {112 * 1024}")
    a(f"s_lshl_b32 s46, s{S_RB}, 4\ns_lshr_b32 s48, s3, 1\ns_lshl_b32 s48, s48, 3\ns_add_u32 s46, s46, s48\ns_lshl_b32 s46, s46, 5\ns_add_u32 s46, s46, s47\ns_lshl_b32 s46, s46, 10\ns_add_u32 s46, s46, {WS_O}")
    for u in U:
        a(f"v_cvt_pk_bf16_f32 v{P(u)}, v{C(u)}, v{C(u) + 1}\nv_cvt_pk_bf16_f32 v{P(u) + 1}, v{C(u) + 2}, v{C(u) + 3}")
        a(f"v_cvt_pk_bf16_f32 v{P(u) + 2}, v{Q(u)}, v{Q(u) + 1}\nv_cvt_pk_bf16_f32 v{P(u) + 3}, v{Q(u) + 2}, v{Q(u) + 3}")
        a(f"buffer_store_dwordx4 {vr(P(u))}, v17, {vr(SRD_WS, 4, 's')}, s46 offen")
        if u < 8: a("s_add_u32 s46, s46, 32768")
    stamp(a, cfg, 2)
    write_stamps(a, cfg, 3, 0)
    a("s_endpgm")


def gen_z(a, cfg):
    a.label("L_k1_z")
    a.hist = []
    L = Loop(a, False, cfg)
    a(f"s_lshl_b32 s46, s{S_IDX}, 1\ns_add_u32 s52, s46, 28\ns_add_u32 s53, s46, 29\ns_mov_b32 s54, s{S_IDX}")
    a(f"s_add_u32 s55, s{S_IDX}, 40\ns_sub_u32 s56, s46, 12\ns_sub_u32 s57, s46, 11")
    a(f"s_cmp_lt_u32 s{S_IDX}, 12\ns_cselect_b32 s52, s52, s55\ns_cselect_b32 s53, s53, s56\ns_cselect_b32 s54, s54, s57")
    a("v_mul_u32_u24 v23, 7168, v23\nv_add_u32 v25, v25, v23")
    for c in range(3):
        a(f"s_lshl_b32 s46, s{52 + c}, 7\ns_add_u32 s46, s46, {4096 - c * 1024}\nv_add_u32 v{10 + c}, s46, v25")
    a(f"s_lshl_b32 s{S_M0X}, s3, 13\ns_mul_i32 s{S_M0W}, s3, 3072\ns_add_u32 s{S_M0W}, s{S_M0W}, {3 * XS_Z}")
    a("s_waitcnt lgkmcnt(0)")
    srd(a, SRD_X, 4, 0x400000)
    srd_biased(a, SRD_W, 36, 0x700000)
    for g in L.dma_x(0) + L.dma_x(1) + L.dma_w(0): a.emit(g)
    srd(a, SRD_WS, S_WSP, WS_SIZE)
    read_bases(a, False)
    gate_loads(a)
    a("s_mov_b32 s64, s52\ns_mov_b32 s65, s53\ns_mov_b32 s66, s54")
    def zero():
        for i in range(192): a(f"v_mov_b32 v{L.ACC + i}, 0")
    if cfg.get("codepf"): cfg["codepf"](a)
    L.run(zero)
    stamp(a, cfg, 1)
    Z = lambda n, u: L.ACC + 4 * (4 * n + u)
    a(f"s_mov_b32 s{S_C1}, {f2u(GELU_C1)}\ns_mov_b32 s{S_C1 + 1}, {f2u(GELU_C1)}\ns_mov_b32 s{S_ONE}, 1.0\ns_mov_b32 s{S_ONE + 1}, 1.0")
    a(f"v_mov_b32 v2, {f2u(GELU_C0)}\nv_mov_b32 v3, {f2u(GELU_C0)}\nv_lshlrev_b32 v1, 4, v0")
    SUM = lambda u: 4 + 4 * u
    tm = [20, 22, 24, 26, 28, 30, 32, 34]
    def gelu(ns, first):
        prs, st = [], []
        for n in ns:
            for h in range(2):
                for u in range(4):
                    prs.append(Z(n, u) + 2 * h)
                    st.append((SUM(u), SUM(u) + 2, first and n == ns[0] and h == 0))
        a.emit(gelu_pairs(prs, tm, S_C1, 2, S_ONE, st))
    isY = f"s_cmp_ge_u32 s{S_IDX}, 12"
    gelu([0, 1, 2, 3], True)
    a(f"{isY}\ns_cbranch_scc1 L_k1_g1")
    gelu([4, 5, 6, 7], False)
    a.label("L_k1_g1")
    a.fence(2)
    for u in range(4):
        a(f"v_add_f32 v{SUM(u)}, v{SUM(u)}, v{SUM(u) + 1}\nv_add_f32 v{SUM(u) + 2}, v{SUM(u) + 2}, v{SUM(u) + 3}")
    for u in range(4): a(f"v_permlane32_swap_b32 v{SUM(u)}, v{SUM(u) + 2}")
    for u in range(4): a(f"v_add_f32 v{SUM(u)}, v{SUM(u)}, v{SUM(u) + 2}")
    a(f"v_permlane16_swap_b32 v{SUM(0)}, v{SUM(1)}\nv_permlane16_swap_b32 v{SUM(2)}, v{SUM(3)}")
    a(f"v_add_f32 v20, v{SUM(0)}, v{SUM(1)}\nv_add_f32 v21, v{SUM(2)}, v{SUM(3)}")
    a(f"s_lshl_b32 s46, s{S_RB}, 2\ns_add_u32 s46, s46, s3\ns_lshl_b32 s46, s46, 13\ns_add_u32 s58, s46, {WS_ST}\ns_lshl_b32 s47, s{S_IDX}, 9\ns_add_u32 s47, s47, s58")
    a(f"v_lshlrev_b32 v22, 3, v0\nbuffer_store_dwordx2 v[20:21], v22, {vr(SRD_WS, 4, 's')}, s47 offen sc1")
    srd(a, SRD_AUX, S_DBG, 256)
    a(f"s_waitcnt vmcnt(0)\ns_barrier")
    a(f"s_lshl_b32 s46, s{S_RB}, 5\nv_mov_b32 v23, s46\nv_mov_b32 v24, 1\ns_cmp_lg_u32 s3, 0\ns_cbranch_scc1 L_k1_noadd")
    a(f"s_mov_b64 exec, 1\nbuffer_atomic_add v24, v23, {vr(SRD_AUX, 4, 's')}, 0 offen\ns_mov_b64 exec, -1")
    a.label("L_k1_noadd")
    stamp(a, cfg, 2)
    def z1(ns, sline):
        a(f"s_lshl_b32 s46, s{S_RB}, 3\ns_lshl_b32 s47, s3, 1\ns_add_u32 s46, s46, s47\ns_mul_i32 s46, s46, {112 * 1024}\ns_lshl_b32 s47, s{sline}, 12\ns_add_u32 s46, s46, s47")
        a(f"s_add_u32 s46, s46, {WS_Z1}\ns_add_u32 s47, s46, {112 * 1024}")
        for k, n in enumerate(ns):
            for tp in range(2):
                b = Z(n, 2 * tp)
                for j in range(4): a(f"v_cvt_pk_bf16_f32 v{b + j}, v{b + 2 * j}, v{b + 2 * j + 1}")
                a(f"buffer_store_dwordx4 {vr(b)}, v1, {vr(SRD_WS, 4, 's')}, s{46 + tp} offen offset:{1024 * k}")
    z1([8, 9, 10, 11], 66)
    a(f"s_cmp_lt_u32 s{S_IDX}, 12\ns_cbranch_scc1 L_k1_z1b")
    a.fence(2)
    z1([4, 5, 6, 7], 65)
    a.label("L_k1_z1b")
    a.fence(2)
    gate_finish(a, 26)
    a("s_mov_b32 s47, 0\ns_cmp_lg_u32 s3, 0\ns_cbranch_scc1 L_k1_polled")
    a.label("L_k1_poll")
    a(f"buffer_load_dword v24, v23, {vr(SRD_AUX, 4, 's')}, 0 offen sc1\ns_waitcnt vmcnt(0)\nv_readfirstlane_b32 s46, v24\ns_cmp_ge_u32 s46, 16\ns_cbranch_scc1 L_k1_polled\ns_sleep 1")
    a("s_add_u32 s47, s47, 1\ns_cmp_lt_u32 s47, 0x80000\ns_cbranch_scc1 L_k1_poll")
    a.label("L_k1_polled")
    a("s_barrier")
    stamp(a, cfg, 3)
    a("s_add_u32 s59, s58, 4096")
    for t in range(16):
        a(f"buffer_load_dwordx2 {vr(24 + 2 * t, 2)}, v22, {vr(SRD_WS, 4, 's')}, s{58 + t // 8} offen offset:{512 * (t % 8)} sc1")
    a("v_and_b32 v2, 3, v0\nv_bfe_u32 v3, v0, 2, 1\nv_lshl_or_b32 v2, v3, 3, v2\nv_bfe_u32 v3, v0, 3, 1\nv_lshl_or_b32 v2, v3, 2, v2\nv_bfe_u32 v3, v0, 4, 1\nv_lshl_or_b32 v2, v3, 4, v2")
    a("v_lshlrev_b32 v2, 5, v2\nv_lshrrev_b32 v3, 5, v0\nv_lshl_or_b32 v1, v3, 4, v2")
    a("s_waitcnt vmcnt(0)")
    for w in (8, 4, 2, 1):
        for j in range(w):
            a(f"v_pk_add_f32 {vr(24 + 2 * j, 2)}, {vr(24 + 2 * j, 2)}, {vr(24 + 2 * (j + w), 2)}")
    a("v_mov_b32 v26, v24\nv_mov_b32 v27, v25\nv_permlane32_swap_b32 v24, v26\nv_permlane32_swap_b32 v25, v27")
    inv = f2u(1.0 / 1792)
    a(f"v_mul_f32 v24, {inv}, v24\nv_mul_f32 v25, {inv}, v25\nv_mul_f32 v26, {inv}, v26\nv_mul_f32 v27, {inv}, v27")
    a(f"v_fma_f32 v26, -v24, v24, v26\nv_fma_f32 v27, -v25, v25, v27\nv_add_f32 v26, {f2u(1e-5)}, v26\nv_add_f32 v27, {f2u(1e-5)}, v27")
    a("v_rsq_f32 v4, v26\nv_rsq_f32 v8, v27\nv_mul_f32 v5, -v24, v4\nv_mul_f32 v9, -v25, v8")
    a("v_mov_b32 v6, v4\nv_mov_b32 v7, v5\nv_mov_b32 v10, v8\nv_mov_b32 v11, v9")
    a("v_permlane16_swap_b32 v4, v6\nv_permlane16_swap_b32 v5, v7\nv_permlane16_swap_b32 v8, v10\nv_permlane16_swap_b32 v9, v11")
    def z2(ns, sline):
        a(f"s_lshl_b32 s46, s{S_RB}, 3\ns_lshl_b32 s47, s3, 1\ns_add_u32 s46, s46, s47\ns_mul_i32 s46, s46, {112 * 1024}\ns_sub_u32 s47, s{sline}, 28\ns_lshl_b32 s47, s47, 12\ns_add_u32 s46, s46, s47")
        if WS_Z2N: a(f"s_add_u32 s46, s46, {WS_Z2N}")
        a(f"s_add_u32 s47, s46, {112 * 1024}")
        for k, n in enumerate(ns):
            for u in range(4):
                for h in range(2):
                    p = vr(Z(n, u) + 2 * h, 2)
                    s_ = vr(4 + 2 * u, 2)
                    a(f"v_pk_fma_f32 {p}, {p}, {s_}, {s_} op_sel:[0,0,1] op_sel_hi:[1,0,1]")
            for tp in range(2):
                b = Z(n, 2 * tp)
                for j in range(4): a(f"v_cvt_pk_bf16_f32 v{b + j}, v{b + 2 * j}, v{b + 2 * j + 1}")
            for tp in range(2):
                b = Z(n, 2 * tp)
                a(f"v_permlane16_swap_b32 v{b}, v{b + 2}\nv_permlane16_swap_b32 v{b + 1}, v{b + 3}")
            for tp in range(2):
                a(f"buffer_store_dwordx4 {vr(Z(n, 2 * tp))}, v1, {vr(SRD_WS, 4, 's')}, s{46 + tp} offen offset:{1024 * k}")
    z2([0, 1, 2, 3], 64)
    a(f"{isY}\ns_cbranch_scc1 L_k1_z2b")
    z2([4, 5, 6, 7], 65)
    a.label("L_k1_z2b")
    a.fence(2)
    write_stamps(a, cfg, 4, 0)
    a.label("L_k1_end")
    a("s_endpgm")


def gen_k1(cfg):
    a = Asm()
    common_prologue(a, cfg)
    gen_q(a, cfg)
    gen_z(a, cfg)
    return head("k1_kernel") + a.text() + "L_k1_codeend:\n", desc("k1_kernel", 512, 256)
```

```python
from asm import *
from common import *

XS_Q, XS_Z = 34816, 32768
WS_Q, WS_Z = 14336, 12288
LDS_K1 = 3 * XS_Q + 4 * WS_Q
S_WAVE = 3
SRD_X, SRD_W, SRD_W2, SRD_WS = 8, 12, 16, 20
S_XS, S_WOFF, S_W2OFF, S_XD, S_XR, S_M0X, S_M0W = 24, 25, 26, 27, 28, 29, 30
S_LO = 32
S_CNT, S_RB, S_IDX, S_M0H = 34, 35, 44, 45
S_DBG, S_WSP = 40, 42
S_T = 46
S_C1, S_ONE = 60, 62
SRD_AUX = 4
GATE_A = 160


def common_prologue(a, cfg):
    a("s_cmp_ge_u32 s2, 256\ns_cbranch_scc1 L_k1_end")
    a("s_load_dwordx4 s[4:7], s[0:1], 0\ns_load_dwordx2 s[36:37], s[0:1], 32\ns_load_dwordx2 s[38:39], s[0:1], 64\ns_load_dwordx4 s[40:43], s[0:1], 80")
    if cfg.get("wpf"):
        touch_ptrs(a)
    if cfg.get("stamp"):
        a("s_memrealtime s[70:71]\ns_memtime s[72:73]")
    a("v_lshrrev_b32 v1, 6, v0\nv_and_b32 v0, 63, v0\nv_readfirstlane_b32 s3, v1")
    a(f"s_and_b32 s46, s2, 7\ns_lshr_b32 s47, s2, 3\ns_and_b32 s{S_RB}, s47, 7\ns_lshr_b32 s47, s47, 3")
    a(f"s_and_b32 s48, s47, 1\ns_lshl_b32 s46, s46, 1\ns_add_u32 s{S_IDX}, s46, s48")
    a(f"s_mov_b32 s{S_LO}, -1\ns_mov_b32 s{S_LO+1}, 0")
    a("v_lshrrev_b32 v20, 3, v0\nv_and_b32 v21, 7, v0\nv_lshrrev_b32 v22, 4, v0")
    a(f"s_lshl_b32 s48, s{S_RB}, 8\ns_lshl_b32 s49, s3, 6\ns_add_u32 s48, s48, s49\nv_add_u32 v23, s48, v20\nv_lshlrev_b32 v23, 11, v23")
    a("v_xor_b32 v24, v21, v22\nv_xor_b32 v25, 4, v24\nv_lshl_add_u32 v24, v24, 4, v23\nv_lshl_add_u32 v25, v25, 4, v23")
    for j in range(8):
        a(f"v_add_u32 v{2 + j}, {j * 16384 - (j % 4) * 1024}, v{24 + (j & 1)}")
    a("s_lshl_b32 s49, s3, 3\nv_add_u32 v23, s49, v20")
    a("s_and_b32 s50, s3, 1\ns_lshl_b32 s50, s50, 1\nv_and_b32 v24, 1, v22\nv_or_b32 v24, s50, v24")
    a("v_lshrrev_b32 v25, 1, v21\nv_xor_b32 v25, v25, v24\nv_lshlrev_b32 v25, 5, v25\nv_and_b32 v26, 1, v0\nv_lshl_add_u32 v25, v26, 4, v25")
    a(f"s_mov_b32 s{S_XS}, 0\ns_mov_b32 s{S_WOFF}, 0\ns_mov_b32 s{S_W2OFF}, 0\ns_mov_b32 s{S_XD}, 0\ns_mov_b32 s{S_XR}, 0")
    a("s_cmp_ge_u32 s47, 2\ns_cbranch_scc1 L_k1_z")


def read_bases(a, q):
    XS = XS_Q if q else XS_Z
    WB = 3 * XS
    blk = 3584 if q else 3072
    a("v_and_b32 v20, 15, v0\nv_lshrrev_b32 v21, 4, v0\nv_lshrrev_b32 v22, 1, v20\nv_xor_b32 v22, v22, v21")
    a("v_lshlrev_b32 v22, 4, v22\nv_lshl_add_u32 v22, v20, 7, v22")
    if q:
        a("s_lshr_b32 s49, s3, 1\ns_lshl_b32 s49, s49, 14")
    else:
        a("s_lshl_b32 s49, s3, 13")
    a("v_add_u32 v14, s49, v22\nv_xor_b32 v15, 64, v14\nv_mov_b32 v16, v14\nv_mov_b32 v17, v15")
    a("v_lshrrev_b32 v20, 2, v0\nv_and_b32 v20, 3, v20\nv_and_b32 v22, 3, v0")
    a("v_lshrrev_b32 v23, 1, v20\nv_and_b32 v24, 1, v21\nv_lshl_or_b32 v23, v24, 1, v23")
    a(f"v_mul_u32_u24 v25, {blk}, v21\nv_lshl_add_u32 v26, v20, 7, v25\nv_lshl_add_u32 v26, v22, 3, v26\nv_add_u32 v26, {WB}, v26")
    if q:
        a("s_and_b32 s49, s3, 1\ns_lshl_b32 s50, s49, 1\nv_xor_b32 v30, s50, v23\nv_lshl_add_u32 v18, v30, 5, v26\nv_xor_b32 v30, 1, v30\nv_lshl_add_u32 v19, v30, 5, v26")
        a(f"v_lshl_add_u32 v26, v20, 6, v25\nv_lshl_add_u32 v26, v22, 3, v26\nv_add_u32 v26, {WB + 3072}, v26")
        a("v_xor_b32 v30, s49, v24\nv_lshl_add_u32 v28, v30, 5, v26")
    else:
        for j, r in enumerate((18, 19, 28, 29)):
            a(f"v_xor_b32 v30, {j}, v23\nv_lshl_add_u32 v{r}, v30, 5, v26")


def gate_loads(a):
    a("s_lshl_b32 s49, s2, 3\ns_lshl_b32 s50, s3, 1\ns_add_u32 s49, s49, s50\ns_lshl_b32 s49, s49, 11\nv_lshlrev_b32 v20, 4, v0")
    a("s_add_u32 s50, s49, 2048")
    for t, so in ((0, "s49"), (1, "s50")):
        for h in range(2):
            r = GATE_A + 8 * t + 4 * h
            a(f"buffer_load_dwordx4 {vr(r, 4, 'a')}, v20, {vr(SRD_X, 4, 's')}, {so} offen offset:{1024 * h}", tag="gate")
    srd(a, SRD_AUX, 38, 2048)
    for h in range(2):
        r = GATE_A + 16 + 4 * h
        a(f"buffer_load_dwordx4 {vr(r, 4, 'a')}, v20, {vr(SRD_AUX, 4, 's')}, 0 offen offset:{1024 * h}", tag="gate")


def gate_finish(a, T):
    for i in range(24):
        a(f"v_accvgpr_read_b32 v{T + i}, a{GATE_A + i}")
    s0, s1 = T + 24, T + 25
    a(f"v_mov_b32 v{s0}, 0\nv_mov_b32 v{s1}, 0")
    for i in range(8):
        a(f"v_dot2c_f32_bf16 v{s0}, v{T + i}, v{T + 16 + i}\nv_dot2c_f32_bf16 v{s1}, v{T + 8 + i}, v{T + 16 + i}")
    a("s_nop 2")
    t = T + 26
    a(f"v_permlane32_swap_b32 v{s0}, v{s1}\nv_add_f32 v{s0}, v{s0}, v{s1}\nv_mov_b32 v{t}, v{s0}")
    a(f"v_permlane16_swap_b32 v{s0}, v{t}\nv_add_f32 v{s0}, v{s0}, v{t}")
    for sh in (8, 4, 2, 1):
        a(f"v_add_f32_dpp v{s0}, v{s0}, v{s0} row_ror:{sh} row_mask:0xf bank_mask:0xf")
    a(f"v_mul_f32 v{s0}, {f2u(-1.4426950408889634)}, v{s0}\nv_exp_f32 v{s0}, v{s0}\nv_add_f32 v{s0}, 1.0, v{s0}\nv_rcp_f32 v{s0}, v{s0}")
    a(f"s_lshl_b32 s49, s2, 5\ns_lshl_b32 s50, s3, 3\ns_add_u32 s49, s49, s50\ns_add_u32 s49, s49, {WS_G}")
    a(f"v_lshrrev_b32 v{t}, 3, v0\nv_and_b32 v{s1}, 31, v0\nv_cmp_eq_u32 vcc, 0, v{s1}")
    a("s_and_saveexec_b64 s[50:51], vcc")
    a(f"buffer_store_dword v{s0}, v{t}, {vr(SRD_WS, 4, 's')}, s49 offen")
    a("s_mov_b64 exec, s[50:51]")


class Loop:
    def __init__(self, a, q, cfg):
        self.a, self.q, self.cfg = a, q, cfg
        self.XS = XS_Q if q else XS_Z
        self.WS = WS_Q if q else WS_Z
        self.WP = 6144 if q else 7168
        self.nx, self.nw = (9, 7) if q else (4, 12)
        self.ACC = 48 if q else 64

    def xf(self, p, u): return 64 * p + 4 * u
    def wf(self, p, n): return 64 * p + 4 * self.nx + 4 * n

    def acc(self, n, u):
        if not self.q:
            return self.ACC + 4 * (4 * n + u), "v"
        if n < 2:
            return self.ACC + 8 * (u - 1) + 4 * n, "v"
        if n < 4:
            return self.ACC + 64 + 8 * u + 4 * (n - 2), "v"
        if n < 6:
            return self.ACC + 136 + 36 * (n - 4) + 4 * u, "v"
        return 128 + 4 * (u - 1), "a"

    def dma_w(self, slot):
        ax = self.cfg.get("auxw", "")
        g = [[f"s_add_u32 m0, s{S_M0W}, {slot * self.WS}", f"buffer_load_dwordx4 v10, {vr(SRD_W, 4, 's')}, s{S_WOFF} offen {ax} lds"]]
        g.append([f"buffer_load_dwordx4 v11, {vr(SRD_W, 4, 's')}, s{S_WOFF} offen offset:1024 {ax} lds"])
        g.append([f"buffer_load_dwordx4 v12, {vr(SRD_W, 4, 's')}, s{S_WOFF} offen offset:2048 {ax} lds", f"s_add_u32 s{S_WOFF}, s{S_WOFF}, {32 * self.WP}"])
        if self.q:
            g.append([f"s_mov_b64 exec, {vr(S_LO, 2, 's')}", f"buffer_load_dwordx4 v13, {vr(SRD_W2, 4, 's')}, s{S_W2OFF} offen offset:3072 {ax} lds",
                      "s_mov_b64 exec, -1", f"s_add_u32 s{S_W2OFF}, s{S_W2OFF}, {32 * 7168}"])
        return g

    def dma_x(self, h):
        ax = self.cfg.get("auxx", "")
        g = []
        for j in range(4):
            pre = []
            if j == 0:
                pre = [f"s_add_u32 m0, s{S_M0X}, s{S_XD}"] + ([f"s_add_u32 m0, m0, 4096"] if h else [])
            g.append(pre + [f"buffer_load_dwordx4 v{2 + 4 * h + j}, {vr(SRD_X, 4, 's')}, s{S_XS} offen offset:{j * 1024} {ax} lds"])
        if h == 1:
            if self.q:
                g.append([f"s_add_u32 m0, s{S_M0H}, s{S_XD}", f"s_mov_b64 exec, {vr(S_LO, 2, 's')}",
                          f"buffer_load_dwordx4 v1, {vr(SRD_X, 4, 's')}, s{S_XS} offen {ax} lds", "s_mov_b64 exec, -1"])
            g[-1] += [f"s_add_u32 s{S_XS}, s{S_XS}, 128", f"s_add_u32 s{S_XD}, s{S_XD}, {self.XS}",
                      f"s_cmp_eq_u32 s{S_XD}, {3 * self.XS}", f"s_cselect_b32 s{S_XD}, 0, s{S_XD}"]
        return g

    def n_w(self): return 4 if self.q else 3
    def n_x(self, h): return 4 + (1 if (h and self.q) else 0)

    def reads(self, i):
        p = i & 1
        g = [[f"ds_read_b128 {vr(self.xf(p, u), 4, 'a')}, v{16 + p} offset:{u * 2048}"] for u in range(self.nx)]
        off = (i % 4) * self.WS
        for n in range(self.nw):
            r = self.wf(p, n)
            st = 512
            if self.q:
                v, o = (18 + (n & 1), off + (n >> 1) * 1024) if n < 6 else (28, off)
                if n == 6: st = 256
            else:
                v, o = (18, 19, 28, 29)[n % 4], off + (n // 4) * 1024
            g.append([f"ds_read_b64_tr_b16 {vr(r, 2, 'a')}, v{v} offset:{o}"])
            g.append([f"ds_read_b64_tr_b16 {vr(r + 2, 2, 'a')}, v{v} offset:{o + st}"])
        return g

    def mfmas(self, i):
        p = i & 1
        out = []
        if self.q:
            for u in range(9):
                ns = [2, 3, 4, 5] if u == 0 else list(range(7))
                if u & 1: ns = ns[::-1]
                for n in ns:
                    d, k = self.acc(n, u)
                    W, X = vr(self.wf(p, n), 4, "a"), vr(self.xf(p, u), 4, "a")
                    out.append(mfma(d, X, W, dk=k) if n in (4, 5) else mfma(d, W, X, dk=k))
        else:
            for n in range(12):
                for u in (range(4) if n % 2 == 0 else range(3, -1, -1)):
                    d, k = self.acc(n, u)
                    out.append(mfma(d, vr(self.wf(p, n), 4, "a"), vr(self.xf(p, u), 4, "a")))
        return out

    def touch(self, kind):
        return touch(kind, self.ACC - 2, self.ACC - 1)

    def step(self, i, dw, dx, wait, last=False, touches=()):
        a = self.a
        a(f"s_waitcnt vmcnt({wait}) lgkmcnt(0)\ns_barrier")
        m = self.mfmas(i)
        n = len(m)
        rd = [] if last else self.reads(i + 1)
        if rd and (i & 1):
            XS = self.XS
            rd = [[f"s_add_u32 s{S_XR}, s{S_XR}, {XS}", f"s_cmp_eq_u32 s{S_XR}, {3 * XS}", f"s_cselect_b32 s{S_XR}, 0, s{S_XR}"],
                  [f"v_add_u32 v16, s{S_XR}, v14", f"v_add_u32 v17, s{S_XR}, v15"]] + rd
        dm = (self.dma_w(i % 4) if dw else []) + (self.dma_x(1 - (i & 1)) if dx else [])
        specs = []
        if rd: specs.append((rd, 0, int(n * 0.8)))
        if dm: specs.append((dm, 0, int(n * 0.9)))
        if touches: specs.append(([self.touch(k) for k in touches], int(n * 0.92), n - 1))
        a.emit(spread2(m, specs))

    def run(self, zero_acc):
        a = self.a
        nd = lambda t: (self.n_w() if t <= 27 else 0) + (self.n_x(1 - (t & 1)) if t <= 26 else 0)
        for g in self.dma_w(1) + self.dma_x(0) + self.dma_w(2) + self.dma_x(1) + self.dma_w(3) + self.dma_x(0):
            a.emit(g)
        zero_acc()
        a(f"s_waitcnt vmcnt({nd(-3) + nd(-2) + nd(-1)})\ns_barrier")
        stamp(a, self.cfg, 0)
        for g in self.reads(0): a.emit(g)
        lab = "L_k1_loop_q" if self.q else "L_k1_loop_z"
        a(f"s_mov_b32 s{S_CNT}, 0")
        a.fence(2)
        a.label(lab)
        for i in range(4):
            self.step(i, True, True, nd(i - 1) + nd(i - 2))
        a(f"s_add_u32 s{S_CNT}, s{S_CNT}, 1\ns_cmp_lt_u32 s{S_CNT}, 6\ns_cbranch_scc1 {lab}")
        wpf = self.cfg.get("wpf") or {}
        nt = lambda t: len(wpf.get(str(t), ()))
        for i in range(24, 32):
            self.step(i, i <= 27, i <= 26, nd(i - 1) + nd(i - 2) + nt(i - 1) + nt(i - 2), last=(i == 31), touches=wpf.get(str(i), ()))


def stamp(a, cfg, k):
    if cfg.get("stamp"):
        a(f"s_memtime s[{74 + 2 * k}:{75 + 2 * k}]")


def dbg_report(a, cfg, n, slot, wsreg):
    lab = a.newlabel("L_dbg")
    a("s_memtime s[90:91]\ns_memrealtime s[92:93]\ns_waitcnt vmcnt(0) lgkmcnt(0)")
    a(f"s_cmp_lg_u32 s2, 128\ns_cbranch_scc1 {lab}\ns_cmp_lg_u32 s3, 0\ns_cbranch_scc1 {lab}")
    srd(a, 96, wsreg, 0x1C00000)
    a("s_sub_u32 s92, s92, s70\ns_sub_u32 s90, s90, s72\ns_sub_u32 s74, s74, s72\ns_sub_u32 s76, s76, s72")
    a("v_mov_b32 v8, s70\nv_mov_b32 v9, s92\nv_mov_b32 v10, s90\nv_mov_b32 v11, s74\nv_mov_b32 v12, s76")
    a(f"v_mov_b32 v1, {0x1B40000 + slot * 32}")
    a("buffer_store_dwordx4 v[8:11], v1, s[96:99], 0 offen\nbuffer_store_dword v12, v1, s[96:99], 0 offen offset:16\ns_waitcnt vmcnt(0)")
    if slot == 2:
        a(f"v_lshlrev_b32 v2, 2, v0\nv_add_u32 v1, {0x1B40000}, v2\nbuffer_load_dword v3, v1, s[96:99], 0 offen sc1\ns_load_dwordx2 s[46:47], s[0:1], 80\ns_waitcnt vmcnt(0) lgkmcnt(0)")
        a("v_cmp_eq_u32 vcc, 0, v0\nv_readfirstlane_b32 s48, v3\nv_and_b32 v4, 7, v0\nv_cmp_eq_u32 vcc, 0, v4\nv_subrev_u32 v5, s48, v3\nv_cndmask_b32 v3, v3, v5, vcc")
        srd(a, 96, 46, 256)
        a("v_lshrrev_b32 v5, 3, v0\nv_mul_u32_u24 v5, 5, v5\nv_add_u32 v5, v5, v4\nv_lshlrev_b32 v5, 2, v5\nv_cmp_gt_u32 vcc, 5, v4\nv_cmp_gt_u32 s[46:47], 24, v0\ns_and_b64 vcc, vcc, s[46:47]")
        a("s_and_saveexec_b64 s[50:51], vcc\nbuffer_store_dword v3, v5, s[96:99], 0 offen\ns_waitcnt vmcnt(0)\ns_mov_b64 exec, s[50:51]")
    a.label(lab)


def write_stamps(a, cfg, n, slot, wsreg=S_WSP):
    if cfg.get("stamp") == 2:
        return dbg_report(a, cfg, n, slot, wsreg)
    if not cfg.get("stamp"):
        return
    a("s_memtime s[90:91]\ns_memrealtime s[92:93]\ns_waitcnt lgkmcnt(0)")
    vals = [70, 92] + [74 + 2 * k for k in range(n)] + [90]
    for j, s in enumerate(vals):
        if j >= 2: a(f"s_sub_u32 s{s}, s{s}, s72")
        a(f"v_mov_b32 v{8 + j}, s{s}")
    a(f"s_lshl_b32 s46, s2, 2\ns_add_u32 s46, s46, s3\ns_lshl_b32 s46, s46, 5\ns_add_u32 s46, s46, {0x1B00000 + slot * 0x10000}\nv_mov_b32 v1, s46")
    a("v_cmp_eq_u32 vcc, 0, v0\ns_and_saveexec_b64 s[50:51], vcc")
    srd(a, 96, wsreg, 0x1C00000)
    a("buffer_store_dwordx4 v[8:11], v1, s[96:99], 0 offen\nbuffer_store_dwordx4 v[12:15], v1, s[96:99], 0 offen offset:16")
    a("s_mov_b64 exec, s[50:51]")


def gen_q(a, cfg):
    L = Loop(a, True, cfg)
    a(f"v_mul_u32_u24 v23, 6144, v23\nv_add_u32 v25, v25, v23\ns_lshl_b32 s48, s{S_IDX}, 7\nv_add_u32 v25, s48, v25")
    for c in range(3):
        a(f"v_add_u32 v{10 + c}, {c * 2048 - c * 1024}, v25")
    a("v_lshrrev_b32 v23, 2, v0\nv_and_b32 v23, 7, v23\nv_add_u32 v23, s49, v23\nv_mul_u32_u24 v23, 7168, v23")
    a("s_and_b32 s50, s3, 1\nv_lshrrev_b32 v24, 1, v0\nv_and_b32 v24, 1, v24\nv_xor_b32 v24, s50, v24\nv_lshlrev_b32 v24, 5, v24\nv_lshl_add_u32 v24, v26, 4, v24")
    a(f"s_lshl_b32 s48, s{S_IDX}, 6\ns_add_u32 s48, s48, {2560 + 4096 - 3072}\nv_add_u32 v24, v24, v23\nv_add_u32 v13, s48, v24")
    a(f"s_lshl_b32 s48, s{S_RB}, 8\ns_max_u32 s48, s48, 16\ns_sub_u32 s48, s48, 16\ns_lshl_b32 s50, s3, 2\ns_add_u32 s48, s48, s50")
    a("v_add_u32 v23, s48, v20\nv_lshlrev_b32 v23, 11, v23\ns_lshl_b32 s50, s3, 1\nv_add_u32 v24, s50, v22\nv_and_b32 v24, 7, v24\nv_xor_b32 v24, v24, v21\nv_lshl_add_u32 v1, v24, 4, v23")
    a(f"s_lshl_b32 s{S_M0X}, s3, 13\ns_add_u32 s{S_M0X}, s{S_M0X}, 2048\ns_lshl_b32 s{S_M0H}, s3, 9")
    a(f"s_mul_i32 s{S_M0W}, s3, 3584\ns_add_u32 s{S_M0W}, s{S_M0W}, {3 * XS_Q}")
    a("s_waitcnt lgkmcnt(0)")
    srd(a, SRD_X, 4, 0x400000)
    srd(a, SRD_W, 6, 0x600000)
    srd_biased(a, SRD_W2, 36, 0x700000)
    for g in L.dma_x(0) + L.dma_x(1) + L.dma_w(0): a.emit(g)
    srd(a, SRD_WS, S_WSP, WS_SIZE)
    read_bases(a, True)
    gate_loads(a)
    def zero():
        for i in range(208): a(f"v_mov_b32 v{L.ACC + i}, 0")
        for i in range(32): a(f"v_accvgpr_write_b32 a{128 + i}, 0")
    if cfg.get("codepf"): cfg["codepf"](a)
    L.run(zero)
    stamp(a, cfg, 1)
    gate_finish(a, 2)
    Q = lambda u: L.ACC + 8 * (u - 1)
    K = lambda u: L.ACC + 64 + 8 * u
    V = lambda n, u: L.ACC + 136 + 36 * n + 2 * u
    P = lambda u: Q(u) + 4
    C = lambda u: K(u) + 4
    U = range(1, 9)
    a("v_and_b32 v2, 15, v0\nv_lshrrev_b32 v3, 4, v0\nv_and_b32 v4, 1, v0\nv_lshl_add_u32 v5, v3, 2, v4\nv_add_u32 v6, 2, v5")
    a("v_cmp_eq_u32 s[50:51], 1, v4\nv_cmp_le_u32 s[52:53], v5, v2\nv_cmp_le_u32 s[54:55], v6, v2")
    a("v_mov_b32 v7, 0x0c0c0100\nv_mov_b32 v8, 0x01000c0c\nv_mov_b32 v9, 0x0c0c0302\nv_mov_b32 v10, 0x03020c0c\nv_mov_b32 v11, 0x0c0c0c0c")
    a("v_cndmask_b32 v7, v7, v8, s[50:51]\nv_cndmask_b32 v9, v9, v10, s[50:51]")
    a("v_cndmask_b32 v12, v7, v11, s[52:53]\nv_cndmask_b32 v13, v9, v11, s[54:55]\nv_cndmask_b32 v14, v11, v7, s[52:53]\nv_cndmask_b32 v15, v11, v9, s[54:55]")
    a(f"s_lshr_b32 s46, s3, 1\ns_or_b32 s46, s46, s{S_RB}\ns_cmp_eq_u32 s46, 0\ns_cselect_b64 s[56:57], -1, 0\nv_mov_b32 v16, 0xff800000")
    for base in [K(u) for u in range(9)] + [Q(u) for u in U]:
        for j in range(4): a(f"v_cvt_pk_bf16_f32 v{base + j}, v{base + 2 * j}, v{base + 2 * j + 1}")
    for u in U:
        a(mfma(P(u), vr(K(u - 1)), vr(Q(u)), "0"))
        a(mfma(C(u), vr(K(u)), vr(Q(u)), "0"))
    for n in range(2):
        b = L.ACC + 136 + 36 * n
        for j in range(18): a(f"v_cvt_pk_bf16_f32 v{b + j}, v{b + 2 * j}, v{b + 2 * j + 1}")
    sc = f2u(32 ** -0.5 * 1.4426950408889634)
    a(f"s_mov_b32 s46, {sc}")
    def each(fmt):
        for u in U:
            a(fmt.format(P0=P(u), P1=P(u) + 1, P2=P(u) + 2, P3=P(u) + 3, C0=C(u), C1=C(u) + 1, C2=C(u) + 2, C3=C(u) + 3))
    each("v_cndmask_b32 v{P0}, v{P0}, v{P1}, s[50:51]\nv_cndmask_b32 v{P2}, v{P2}, v{P3}, s[50:51]")
    a(f"v_cndmask_b32 v{P(1)}, v{P(1)}, v16, s[56:57]\nv_cndmask_b32 v{P(1) + 2}, v{P(1) + 2}, v16, s[56:57]")
    each("v_cndmask_b32 v{C0}, v{C0}, v{C1}, s[50:51]\nv_cndmask_b32 v{C2}, v{C2}, v{C3}, s[50:51]")
    each("v_cndmask_b32 v{P0}, v{P0}, v{C0}, s[52:53]\nv_cndmask_b32 v{P2}, v{P2}, v{C2}, s[54:55]")
    each("v_max_f32 v{P1}, v{P0}, v{P2}")
    def xreduce(op):
        each("v_mov_b32 v{P3}, v{P1}")
        each("v_permlane32_swap_b32 v{P1}, v{P3}")
        each(op + " v{P1}, v{P1}, v{P3}")
        each("v_mov_b32 v{P3}, v{P1}")
        each("v_permlane16_swap_b32 v{P1}, v{P3}")
        each(op + " v{P1}, v{P1}, v{P3}")
    xreduce("v_max_f32")
    each("v_sub_f32 v{P0}, v{P0}, v{P1}\nv_sub_f32 v{P2}, v{P2}, v{P1}")
    each("v_mul_f32 v{P0}, s46, v{P0}\nv_mul_f32 v{P2}, s46, v{P2}")
    each("v_exp_f32 v{P0}, v{P0}\nv_exp_f32 v{P2}, v{P2}")
    each("v_add_f32 v{P1}, v{P0}, v{P2}")
    xreduce("v_add_f32")
    each("v_rcp_f32 v{P1}, v{P1}")
    each("v_mul_f32 v{P0}, v{P0}, v{P1}\nv_mul_f32 v{P2}, v{P2}, v{P1}")
    each("v_cvt_pk_bf16_f32 v{C1}, v{P0}, v{P2}")
    each("v_perm_b32 v{P0}, v{C1}, v{C1}, v12\nv_perm_b32 v{P1}, v{C1}, v{C1}, v13\nv_perm_b32 v{P2}, v{C1}, v{C1}, v14\nv_perm_b32 v{P3}, v{C1}, v{C1}, v15")
    for u in U:
        a(mfma(C(u), vr(V(0, u - 1)), vr(P(u)), "0"))
        a(mfma(Q(u), vr(V(1, u - 1)), vr(P(u)), "0"))
    a("v_lshlrev_b32 v17, 4, v0")
    a(f"s_lshl_b32 s46, s{S_RB}, 3\ns_lshr_b32 s47, s3, 1\ns_lshl_b32 s47, s47, 2\ns_add_u32 s46, s46, s47\ns_mul_i32 s46, s46, {112 * 1024}")
    a(f"s_lshl_b32 s47, s{S_IDX}, 1\ns_and_b32 s48, s3, 1\ns_add_u32 s47, s47, s48\ns_add_u32 s49, s47, 80\ns_lshl_b32 s49, s49, 10\ns_add_u32 s46, s46, s49\ns_add_u32 s46, s46, {WS_Z1}")
    for tp in range(4):
        T = 18 + 8 * (tp % 3)
        for j in range(8): a(f"v_accvgpr_read_b32 v{T + j}, a{128 + 8 * tp + j}")
        for j in range(4): a(f"v_cvt_pk_bf16_f32 v{T + j}, v{T + 2 * j}, v{T + 2 * j + 1}")
        a(f"buffer_store_dwordx4 {vr(T)}, v17, {vr(SRD_WS, 4, 's')}, s46 offen")
        if tp < 3: a(f"s_add_u32 s46, s46, {112 * 1024}")
    a(f"s_lshl_b32 s46, s{S_RB}, 4\ns_lshr_b32 s48, s3, 1\ns_lshl_b32 s48, s48, 3\ns_add_u32 s46, s46, s48\ns_lshl_b32 s46, s46, 5\ns_add_u32 s46, s46, s47\ns_lshl_b32 s46, s46, 10\ns_add_u32 s46, s46, {WS_O}")
    for u in U:
        a(f"v_cvt_pk_bf16_f32 v{P(u)}, v{C(u)}, v{C(u) + 1}\nv_cvt_pk_bf16_f32 v{P(u) + 1}, v{C(u) + 2}, v{C(u) + 3}")
        a(f"v_cvt_pk_bf16_f32 v{P(u) + 2}, v{Q(u)}, v{Q(u) + 1}\nv_cvt_pk_bf16_f32 v{P(u) + 3}, v{Q(u) + 2}, v{Q(u) + 3}")
        a(f"buffer_store_dwordx4 {vr(P(u))}, v17, {vr(SRD_WS, 4, 's')}, s46 offen")
        if u < 8: a("s_add_u32 s46, s46, 32768")
    stamp(a, cfg, 2)
    write_stamps(a, cfg, 3, 0)
    a("s_endpgm")


def gen_z(a, cfg):
    a.label("L_k1_z")
    a.hist = []
    L = Loop(a, False, cfg)
    a(f"s_lshl_b32 s46, s{S_IDX}, 1\ns_add_u32 s52, s46, 28\ns_add_u32 s53, s46, 29\ns_mov_b32 s54, s{S_IDX}")
    a(f"s_add_u32 s55, s{S_IDX}, 40\ns_sub_u32 s56, s46, 12\ns_sub_u32 s57, s46, 11")
    a(f"s_cmp_lt_u32 s{S_IDX}, 12\ns_cselect_b32 s52, s52, s55\ns_cselect_b32 s53, s53, s56\ns_cselect_b32 s54, s54, s57")
    a("v_mul_u32_u24 v23, 7168, v23\nv_add_u32 v25, v25, v23")
    for c in range(3):
        a(f"s_lshl_b32 s46, s{52 + c}, 7\ns_add_u32 s46, s46, {4096 - c * 1024}\nv_add_u32 v{10 + c}, s46, v25")
    a(f"s_lshl_b32 s{S_M0X}, s3, 13\ns_mul_i32 s{S_M0W}, s3, 3072\ns_add_u32 s{S_M0W}, s{S_M0W}, {3 * XS_Z}")
    a("s_waitcnt lgkmcnt(0)")
    srd(a, SRD_X, 4, 0x400000)
    srd_biased(a, SRD_W, 36, 0x700000)
    for g in L.dma_x(0) + L.dma_x(1) + L.dma_w(0): a.emit(g)
    srd(a, SRD_WS, S_WSP, WS_SIZE)
    read_bases(a, False)
    gate_loads(a)
    a("s_mov_b32 s64, s52\ns_mov_b32 s65, s53\ns_mov_b32 s66, s54")
    def zero():
        for i in range(192): a(f"v_mov_b32 v{L.ACC + i}, 0")
    if cfg.get("codepf"): cfg["codepf"](a)
    L.run(zero)
    stamp(a, cfg, 1)
    Z = lambda n, u: L.ACC + 4 * (4 * n + u)
    a(f"s_mov_b32 s{S_C1}, {f2u(GELU_C1)}\ns_mov_b32 s{S_C1 + 1}, {f2u(GELU_C1)}\ns_mov_b32 s{S_ONE}, 1.0\ns_mov_b32 s{S_ONE + 1}, 1.0")
    a(f"v_mov_b32 v2, {f2u(GELU_C0)}\nv_mov_b32 v3, {f2u(GELU_C0)}\nv_lshlrev_b32 v1, 4, v0")
    SUM = lambda u: 4 + 4 * u
    tm = [20, 22, 24, 26, 28, 30, 32, 34]
    def gelu(ns, first):
        prs, st = [], []
        for n in ns:
            for h in range(2):
                for u in range(4):
                    prs.append(Z(n, u) + 2 * h)
                    st.append((SUM(u), SUM(u) + 2, first and n == ns[0] and h == 0))
        a.emit(gelu_pairs(prs, tm, S_C1, 2, S_ONE, st))
    isY = f"s_cmp_ge_u32 s{S_IDX}, 12"
    gelu([0, 1, 2, 3], True)
    a(f"{isY}\ns_cbranch_scc1 L_k1_g1")
    gelu([4, 5, 6, 7], False)
    a.label("L_k1_g1")
    a.fence(2)
    for u in range(4):
        a(f"v_add_f32 v{SUM(u)}, v{SUM(u)}, v{SUM(u) + 1}\nv_add_f32 v{SUM(u) + 2}, v{SUM(u) + 2}, v{SUM(u) + 3}")
    for u in range(4): a(f"v_permlane32_swap_b32 v{SUM(u)}, v{SUM(u) + 2}")
    for u in range(4): a(f"v_add_f32 v{SUM(u)}, v{SUM(u)}, v{SUM(u) + 2}")
    a(f"v_permlane16_swap_b32 v{SUM(0)}, v{SUM(1)}\nv_permlane16_swap_b32 v{SUM(2)}, v{SUM(3)}")
    a(f"v_add_f32 v20, v{SUM(0)}, v{SUM(1)}\nv_add_f32 v21, v{SUM(2)}, v{SUM(3)}")
    a(f"s_lshl_b32 s46, s{S_RB}, 2\ns_add_u32 s46, s46, s3\ns_lshl_b32 s46, s46, 13\ns_add_u32 s58, s46, {WS_ST}\ns_lshl_b32 s47, s{S_IDX}, 9\ns_add_u32 s47, s47, s58")
    a(f"v_lshlrev_b32 v22, 3, v0\nbuffer_store_dwordx2 v[20:21], v22, {vr(SRD_WS, 4, 's')}, s47 offen sc1")
    srd(a, SRD_AUX, S_DBG, 256)
    a(f"s_waitcnt vmcnt(0)\ns_barrier")
    a(f"s_lshl_b32 s46, s{S_RB}, 5\nv_mov_b32 v23, s46\nv_mov_b32 v24, 1\ns_cmp_lg_u32 s3, 0\ns_cbranch_scc1 L_k1_noadd")
    a(f"s_mov_b64 exec, 1\nbuffer_atomic_add v24, v23, {vr(SRD_AUX, 4, 's')}, 0 offen\ns_mov_b64 exec, -1")
    a.label("L_k1_noadd")
    stamp(a, cfg, 2)
    def z1(ns, sline):
        a(f"s_lshl_b32 s46, s{S_RB}, 3\ns_lshl_b32 s47, s3, 1\ns_add_u32 s46, s46, s47\ns_mul_i32 s46, s46, {112 * 1024}\ns_lshl_b32 s47, s{sline}, 12\ns_add_u32 s46, s46, s47")
        a(f"s_add_u32 s46, s46, {WS_Z1}\ns_add_u32 s47, s46, {112 * 1024}")
        for k, n in enumerate(ns):
            for tp in range(2):
                b = Z(n, 2 * tp)
                for j in range(4): a(f"v_cvt_pk_bf16_f32 v{b + j}, v{b + 2 * j}, v{b + 2 * j + 1}")
                a(f"buffer_store_dwordx4 {vr(b)}, v1, {vr(SRD_WS, 4, 's')}, s{46 + tp} offen offset:{1024 * k}")
    z1([8, 9, 10, 11], 66)
    a(f"s_cmp_lt_u32 s{S_IDX}, 12\ns_cbranch_scc1 L_k1_z1b")
    a.fence(2)
    z1([4, 5, 6, 7], 65)
    a.label("L_k1_z1b")
    a.fence(2)
    gate_finish(a, 26)
    a("s_mov_b32 s47, 0\ns_cmp_lg_u32 s3, 0\ns_cbranch_scc1 L_k1_polled")
    a.label("L_k1_poll")
    a(f"buffer_load_dword v24, v23, {vr(SRD_AUX, 4, 's')}, 0 offen sc1\ns_waitcnt vmcnt(0)\nv_readfirstlane_b32 s46, v24\ns_cmp_ge_u32 s46, 16\ns_cbranch_scc1 L_k1_polled\ns_sleep 1")
    a("s_add_u32 s47, s47, 1\ns_cmp_lt_u32 s47, 0x80000\ns_cbranch_scc1 L_k1_poll")
    a.label("L_k1_polled")
    a("s_barrier")
    stamp(a, cfg, 3)
    a("s_add_u32 s59, s58, 4096")
    for t in range(16):
        a(f"buffer_load_dwordx2 {vr(24 + 2 * t, 2)}, v22, {vr(SRD_WS, 4, 's')}, s{58 + t // 8} offen offset:{512 * (t % 8)} sc1")
    a("v_and_b32 v2, 3, v0\nv_bfe_u32 v3, v0, 2, 1\nv_lshl_or_b32 v2, v3, 3, v2\nv_bfe_u32 v3, v0, 3, 1\nv_lshl_or_b32 v2, v3, 2, v2\nv_bfe_u32 v3, v0, 4, 1\nv_lshl_or_b32 v2, v3, 4, v2")
    a("v_lshlrev_b32 v2, 5, v2\nv_lshrrev_b32 v3, 5, v0\nv_lshl_or_b32 v1, v3, 4, v2")
    a("s_waitcnt vmcnt(0)")
    for w in (8, 4, 2, 1):
        for j in range(w):
            a(f"v_pk_add_f32 {vr(24 + 2 * j, 2)}, {vr(24 + 2 * j, 2)}, {vr(24 + 2 * (j + w), 2)}")
    a("v_mov_b32 v26, v24\nv_mov_b32 v27, v25\nv_permlane32_swap_b32 v24, v26\nv_permlane32_swap_b32 v25, v27")
    inv = f2u(1.0 / 1792)
    a(f"v_mul_f32 v24, {inv}, v24\nv_mul_f32 v25, {inv}, v25\nv_mul_f32 v26, {inv}, v26\nv_mul_f32 v27, {inv}, v27")
    a(f"v_fma_f32 v26, -v24, v24, v26\nv_fma_f32 v27, -v25, v25, v27\nv_add_f32 v26, {f2u(1e-5)}, v26\nv_add_f32 v27, {f2u(1e-5)}, v27")
    a("v_rsq_f32 v4, v26\nv_rsq_f32 v8, v27\nv_mul_f32 v5, -v24, v4\nv_mul_f32 v9, -v25, v8")
    a("v_mov_b32 v6, v4\nv_mov_b32 v7, v5\nv_mov_b32 v10, v8\nv_mov_b32 v11, v9")
    a("v_permlane16_swap_b32 v4, v6\nv_permlane16_swap_b32 v5, v7\nv_permlane16_swap_b32 v8, v10\nv_permlane16_swap_b32 v9, v11")
    def z2(ns, sline):
        a(f"s_lshl_b32 s46, s{S_RB}, 3\ns_lshl_b32 s47, s3, 1\ns_add_u32 s46, s46, s47\ns_mul_i32 s46, s46, {112 * 1024}\ns_sub_u32 s47, s{sline}, 28\ns_lshl_b32 s47, s47, 12\ns_add_u32 s46, s46, s47")
        if WS_Z2N: a(f"s_add_u32 s46, s46, {WS_Z2N}")
        a(f"s_add_u32 s47, s46, {112 * 1024}")
        for k, n in enumerate(ns):
            for u in range(4):
                for h in range(2):
                    p = vr(Z(n, u) + 2 * h, 2)
                    s_ = vr(4 + 2 * u, 2)
                    a(f"v_pk_fma_f32 {p}, {p}, {s_}, {s_} op_sel:[0,0,1] op_sel_hi:[1,0,1]")
            for tp in range(2):
                b = Z(n, 2 * tp)
                for j in range(4): a(f"v_cvt_pk_bf16_f32 v{b + j}, v{b + 2 * j}, v{b + 2 * j + 1}")
            for tp in range(2):
                b = Z(n, 2 * tp)
                a(f"v_permlane16_swap_b32 v{b}, v{b + 2}\nv_permlane16_swap_b32 v{b + 1}, v{b + 3}")
            for tp in range(2):
                a(f"buffer_store_dwordx4 {vr(Z(n, 2 * tp))}, v1, {vr(SRD_WS, 4, 's')}, s{46 + tp} offen offset:{1024 * k}")
    z2([0, 1, 2, 3], 64)
    a(f"{isY}\ns_cbranch_scc1 L_k1_z2b")
    z2([4, 5, 6, 7], 65)
    a.label("L_k1_z2b")
    a.fence(2)
    write_stamps(a, cfg, 4, 0)
    a.label("L_k1_end")
    a("s_endpgm")


def gen_k1(cfg):
    a = Asm()
    common_prologue(a, cfg)
    gen_q(a, cfg)
    gen_z(a, cfg)
    return head("k1_kernel") + a.text() + "L_k1_codeend:\n", desc("k1_kernel", 512, 256)
```

```python
from asm import *
from common import *

XS_Q, XS_Z = 34816, 32768
WS_Q, WS_Z = 14336, 12288
LDS_K1 = 3 * XS_Q + 4 * WS_Q
S_WAVE = 3
SRD_X, SRD_W, SRD_W2, SRD_WS = 8, 12, 16, 20
S_XS, S_WOFF, S_W2OFF, S_XD, S_XR, S_M0X, S_M0W = 24, 25, 26, 27, 28, 29, 30
S_LO = 32
S_CNT, S_RB, S_IDX, S_M0H = 34, 35, 44, 45
S_DBG, S_WSP = 40, 42
S_T = 46
S_C1, S_ONE = 60, 62
SRD_AUX = 4
GATE_A = 160


def common_prologue(a, cfg):
    a("s_cmp_ge_u32 s2, 256\ns_cbranch_scc1 L_k1_end")
    a("s_load_dwordx4 s[4:7], s[0:1], 0\ns_load_dwordx2 s[36:37], s[0:1], 32\ns_load_dwordx2 s[38:39], s[0:1], 64\ns_load_dwordx4 s[40:43], s[0:1], 80")
    if cfg.get("wpf"):
        touch_ptrs(a)
    if cfg.get("stamp"):
        a("s_memrealtime s[70:71]\ns_memtime s[72:73]")
    a("v_lshrrev_b32 v1, 6, v0\nv_and_b32 v0, 63, v0\nv_readfirstlane_b32 s3, v1")
    a(f"s_and_b32 s46, s2, 7\ns_lshr_b32 s47, s2, 3\ns_and_b32 s{S_RB}, s47, 7\ns_lshr_b32 s47, s47, 3")
    a(f"s_and_b32 s48, s47, 1\ns_lshl_b32 s46, s46, 1\ns_add_u32 s{S_IDX}, s46, s48")
    a(f"s_mov_b32 s{S_LO}, -1\ns_mov_b32 s{S_LO+1}, 0")
    a("v_lshrrev_b32 v20, 3, v0\nv_and_b32 v21, 7, v0\nv_lshrrev_b32 v22, 4, v0")
    a(f"s_lshl_b32 s48, s{S_RB}, 8\ns_lshl_b32 s49, s3, 6\ns_add_u32 s48, s48, s49\nv_add_u32 v23, s48, v20\nv_lshlrev_b32 v23, 11, v23")
    a("v_xor_b32 v24, v21, v22\nv_xor_b32 v25, 4, v24\nv_lshl_add_u32 v24, v24, 4, v23\nv_lshl_add_u32 v25, v25, 4, v23")
    for j in range(8):
        a(f"v_add_u32 v{2 + j}, {j * 16384 - (j % 4) * 1024}, v{24 + (j & 1)}")
    a("s_lshl_b32 s49, s3, 3\nv_add_u32 v23, s49, v20")
    a("s_and_b32 s50, s3, 1\ns_lshl_b32 s50, s50, 1\nv_and_b32 v24, 1, v22\nv_or_b32 v24, s50, v24")
    a("v_lshrrev_b32 v25, 1, v21\nv_xor_b32 v25, v25, v24\nv_lshlrev_b32 v25, 5, v25\nv_and_b32 v26, 1, v0\nv_lshl_add_u32 v25, v26, 4, v25")
    a(f"s_mov_b32 s{S_XS}, 0\ns_mov_b32 s{S_WOFF}, 0\ns_mov_b32 s{S_W2OFF}, 0\ns_mov_b32 s{S_XD}, 0\ns_mov_b32 s{S_XR}, 0")
    a("s_cmp_ge_u32 s47, 2\ns_cbranch_scc1 L_k1_z")


def read_bases(a, q):
    XS = XS_Q if q else XS_Z
    WB = 3 * XS
    blk = 3584 if q else 3072
    a("v_and_b32 v20, 15, v0\nv_lshrrev_b32 v21, 4, v0\nv_lshrrev_b32 v22, 1, v20\nv_xor_b32 v22, v22, v21")
    a("v_lshlrev_b32 v22, 4, v22\nv_lshl_add_u32 v22, v20, 7, v22")
    if q:
        a("s_lshr_b32 s49, s3, 1\ns_lshl_b32 s49, s49, 14")
    else:
        a("s_lshl_b32 s49, s3, 13")
    a("v_add_u32 v14, s49, v22\nv_xor_b32 v15, 64, v14\nv_mov_b32 v16, v14\nv_mov_b32 v17, v15")
    a("v_lshrrev_b32 v20, 2, v0\nv_and_b32 v20, 3, v20\nv_and_b32 v22, 3, v0")
    a("v_lshrrev_b32 v23, 1, v20\nv_and_b32 v24, 1, v21\nv_lshl_or_b32 v23, v24, 1, v23")
    a(f"v_mul_u32_u24 v25, {blk}, v21\nv_lshl_add_u32 v26, v20, 7, v25\nv_lshl_add_u32 v26, v22, 3, v26\nv_add_u32 v26, {WB}, v26")
    if q:
        a("s_and_b32 s49, s3, 1\ns_lshl_b32 s50, s49, 1\nv_xor_b32 v30, s50, v23\nv_lshl_add_u32 v18, v30, 5, v26\nv_xor_b32 v30, 1, v30\nv_lshl_add_u32 v19, v30, 5, v26")
        a(f"v_lshl_add_u32 v26, v20, 6, v25\nv_lshl_add_u32 v26, v22, 3, v26\nv_add_u32 v26, {WB + 3072}, v26")
        a("v_xor_b32 v30, s49, v24\nv_lshl_add_u32 v28, v30, 5, v26")
    else:
        for j, r in enumerate((18, 19, 28, 29)):
            a(f"v_xor_b32 v30, {j}, v23\nv_lshl_add_u32 v{r}, v30, 5, v26")


def gate_loads(a):
    a("s_lshl_b32 s49, s2, 3\ns_lshl_b32 s50, s3, 1\ns_add_u32 s49, s49, s50\ns_lshl_b32 s49, s49, 11\nv_lshlrev_b32 v20, 4, v0")
    a("s_add_u32 s50, s49, 2048")
    for t, so in ((0, "s49"), (1, "s50")):
        for h in range(2):
            r = GATE_A + 8 * t + 4 * h
            a(f"buffer_load_dwordx4 {vr(r, 4, 'a')}, v20, {vr(SRD_X, 4, 's')}, {so} offen offset:{1024 * h}", tag="gate")
    srd(a, SRD_AUX, 38, 2048)
    for h in range(2):
        r = GATE_A + 16 + 4 * h
        a(f"buffer_load_dwordx4 {vr(r, 4, 'a')}, v20, {vr(SRD_AUX, 4, 's')}, 0 offen offset:{1024 * h}", tag="gate")


def gate_finish(a, T):
    for i in range(24):
        a(f"v_accvgpr_read_b32 v{T + i}, a{GATE_A + i}")
    s0, s1 = T + 24, T + 25
    a(f"v_mov_b32 v{s0}, 0\nv_mov_b32 v{s1}, 0")
    for i in range(8):
        a(f"v_dot2c_f32_bf16 v{s0}, v{T + i}, v{T + 16 + i}\nv_dot2c_f32_bf16 v{s1}, v{T + 8 + i}, v{T + 16 + i}")
    a("s_nop 2")
    t = T + 26
    a(f"v_permlane32_swap_b32 v{s0}, v{s1}\nv_add_f32 v{s0}, v{s0}, v{s1}\nv_mov_b32 v{t}, v{s0}")
    a(f"v_permlane16_swap_b32 v{s0}, v{t}\nv_add_f32 v{s0}, v{s0}, v{t}")
    for sh in (8, 4, 2, 1):
        a(f"v_add_f32_dpp v{s0}, v{s0}, v{s0} row_ror:{sh} row_mask:0xf bank_mask:0xf")
    a(f"v_mul_f32 v{s0}, {f2u(-1.4426950408889634)}, v{s0}\nv_exp_f32 v{s0}, v{s0}\nv_add_f32 v{s0}, 1.0, v{s0}\nv_rcp_f32 v{s0}, v{s0}")
    a(f"s_lshl_b32 s49, s2, 5\ns_lshl_b32 s50, s3, 3\ns_add_u32 s49, s49, s50\ns_add_u32 s49, s49, {WS_G}")
    a(f"v_lshrrev_b32 v{t}, 3, v0\nv_and_b32 v{s1}, 31, v0\nv_cmp_eq_u32 vcc, 0, v{s1}")
    a("s_and_saveexec_b64 s[50:51], vcc")
    a(f"buffer_store_dword v{s0}, v{t}, {vr(SRD_WS, 4, 's')}, s49 offen")
    a("s_mov_b64 exec, s[50:51]")


class Loop:
    def __init__(self, a, q, cfg):
        self.a, self.q, self.cfg = a, q, cfg
        self.XS = XS_Q if q else XS_Z
        self.WS = WS_Q if q else WS_Z
        self.WP = 6144 if q else 7168
        self.nx, self.nw = (9, 7) if q else (4, 12)
        self.ACC = 48 if q else 64

    def xf(self, p, u): return 64 * p + 4 * u
    def wf(self, p, n): return 64 * p + 4 * self.nx + 4 * n

    def acc(self, n, u):
        if not self.q:
            return self.ACC + 4 * (4 * n + u), "v"
        if n < 2:
            return self.ACC + 8 * (u - 1) + 4 * n, "v"
        if n < 4:
            return self.ACC + 64 + 8 * u + 4 * (n - 2), "v"
        if n < 6:
            return self.ACC + 136 + 36 * (n - 4) + 4 * u, "v"
        return 128 + 4 * (u - 1), "a"

    def dma_w(self, slot):
        ax = self.cfg.get("auxw", "")
        g = [[f"s_add_u32 m0, s{S_M0W}, {slot * self.WS}", f"buffer_load_dwordx4 v10, {vr(SRD_W, 4, 's')}, s{S_WOFF} offen {ax} lds"]]
        g.append([f"buffer_load_dwordx4 v11, {vr(SRD_W, 4, 's')}, s{S_WOFF} offen offset:1024 {ax} lds"])
        g.append([f"buffer_load_dwordx4 v12, {vr(SRD_W, 4, 's')}, s{S_WOFF} offen offset:2048 {ax} lds", f"s_add_u32 s{S_WOFF}, s{S_WOFF}, {32 * self.WP}"])
        if self.q:
            g.append([f"s_mov_b64 exec, {vr(S_LO, 2, 's')}", f"buffer_load_dwordx4 v13, {vr(SRD_W2, 4, 's')}, s{S_W2OFF} offen offset:3072 {ax} lds",
                      "s_mov_b64 exec, -1", f"s_add_u32 s{S_W2OFF}, s{S_W2OFF}, {32 * 7168}"])
        return g

    def dma_x(self, h):
        ax = self.cfg.get("auxx", "")
        g = []
        for j in range(4):
            pre = []
            if j == 0:
                pre = [f"s_add_u32 m0, s{S_M0X}, s{S_XD}"] + ([f"s_add_u32 m0, m0, 4096"] if h else [])
            g.append(pre + [f"buffer_load_dwordx4 v{2 + 4 * h + j}, {vr(SRD_X, 4, 's')}, s{S_XS} offen offset:{j * 1024} {ax} lds"])
        if h == 1:
            if self.q:
                g.append([f"s_add_u32 m0, s{S_M0H}, s{S_XD}", f"s_mov_b64 exec, {vr(S_LO, 2, 's')}",
                          f"buffer_load_dwordx4 v1, {vr(SRD_X, 4, 's')}, s{S_XS} offen {ax} lds", "s_mov_b64 exec, -1"])
            g[-1] += [f"s_add_u32 s{S_XS}, s{S_XS}, 128", f"s_add_u32 s{S_XD}, s{S_XD}, {self.XS}",
                      f"s_cmp_eq_u32 s{S_XD}, {3 * self.XS}", f"s_cselect_b32 s{S_XD}, 0, s{S_XD}"]
        return g

    def n_w(self): return 4 if self.q else 3
    def n_x(self, h): return 4 + (1 if (h and self.q) else 0)

    def reads(self, i):
        p = i & 1
        g = [[f"ds_read_b128 {vr(self.xf(p, u), 4, 'a')}, v{16 + p} offset:{u * 2048}"] for u in range(self.nx)]
        off = (i % 4) * self.WS
        for n in range(self.nw):
            r = self.wf(p, n)
            st = 512
            if self.q:
                v, o = (18 + (n & 1), off + (n >> 1) * 1024) if n < 6 else (28, off)
                if n == 6: st = 256
            else:
                v, o = (18, 19, 28, 29)[n % 4], off + (n // 4) * 1024
            g.append([f"ds_read_b64_tr_b16 {vr(r, 2, 'a')}, v{v} offset:{o}"])
            g.append([f"ds_read_b64_tr_b16 {vr(r + 2, 2, 'a')}, v{v} offset:{o + st}"])
        return g

    def mfmas(self, i):
        p = i & 1
        out = []
        if self.q:
            for u in range(9):
                ns = [2, 3, 4, 5] if u == 0 else list(range(7))
                if u & 1: ns = ns[::-1]
                for n in ns:
                    d, k = self.acc(n, u)
                    W, X = vr(self.wf(p, n), 4, "a"), vr(self.xf(p, u), 4, "a")
                    out.append(mfma(d, X, W, dk=k) if n in (4, 5) else mfma(d, W, X, dk=k))
        else:
            for n in range(12):
                for u in (range(4) if n % 2 == 0 else range(3, -1, -1)):
                    d, k = self.acc(n, u)
                    out.append(mfma(d, vr(self.wf(p, n), 4, "a"), vr(self.xf(p, u), 4, "a")))
        return out

    def touch(self, kind):
        return touch(kind, self.ACC - 2, self.ACC - 1)

    def step(self, i, dw, dx, wait, last=False, touches=()):
        a = self.a
        a(f"s_waitcnt vmcnt({wait}) lgkmcnt(0)\ns_barrier")
        m = self.mfmas(i)
        n = len(m)
        rd = [] if last else self.reads(i + 1)
        if rd and (i & 1):
            XS = self.XS
            rd = [[f"s_add_u32 s{S_XR}, s{S_XR}, {XS}", f"s_cmp_eq_u32 s{S_XR}, {3 * XS}", f"s_cselect_b32 s{S_XR}, 0, s{S_XR}"],
                  [f"v_add_u32 v16, s{S_XR}, v14", f"v_add_u32 v17, s{S_XR}, v15"]] + rd
        dm = (self.dma_w(i % 4) if dw else []) + (self.dma_x(1 - (i & 1)) if dx else [])
        specs = []
        if rd: specs.append((rd, 0, int(n * 0.8)))
        if dm: specs.append((dm, 0, int(n * 0.9)))
        if touches: specs.append(([self.touch(k) for k in touches], int(n * 0.92), n - 1))
        a.emit(spread2(m, specs))

    def run(self, zero_acc):
        a = self.a
        nd = lambda t: (self.n_w() if t <= 27 else 0) + (self.n_x(1 - (t & 1)) if t <= 26 else 0)
        for g in self.dma_w(1) + self.dma_x(0) + self.dma_w(2) + self.dma_x(1) + self.dma_w(3) + self.dma_x(0):
            a.emit(g)
        zero_acc()
        a(f"s_waitcnt vmcnt({nd(-3) + nd(-2) + nd(-1)})\ns_barrier")
        stamp(a, self.cfg, 0)
        for g in self.reads(0): a.emit(g)
        lab = "L_k1_loop_q" if self.q else "L_k1_loop_z"
        a(f"s_mov_b32 s{S_CNT}, 0")
        a.fence(2)
        a.label(lab)
        for i in range(4):
            self.step(i, True, True, nd(i - 1) + nd(i - 2))
        a(f"s_add_u32 s{S_CNT}, s{S_CNT}, 1\ns_cmp_lt_u32 s{S_CNT}, 6\ns_cbranch_scc1 {lab}")
        wpf = self.cfg.get("wpf") or {}
        nt = lambda t: len(wpf.get(str(t), ()))
        for i in range(24, 32):
            self.step(i, i <= 27, i <= 26, nd(i - 1) + nd(i - 2) + nt(i - 1) + nt(i - 2), last=(i == 31), touches=wpf.get(str(i), ()))


def stamp(a, cfg, k):
    if cfg.get("stamp"):
        a(f"s_memtime s[{74 + 2 * k}:{75 + 2 * k}]")


def dbg_report(a, cfg, n, slot, wsreg):
    lab = a.newlabel("L_dbg")
    a("s_memtime s[90:91]\ns_memrealtime s[92:93]\ns_waitcnt vmcnt(0) lgkmcnt(0)")
    a(f"s_cmp_lg_u32 s2, 128\ns_cbranch_scc1 {lab}\ns_cmp_lg_u32 s3, 0\ns_cbranch_scc1 {lab}")
    srd(a, 96, wsreg, 0x1C00000)
    a("s_sub_u32 s92, s92, s70\ns_sub_u32 s90, s90, s72\ns_sub_u32 s74, s74, s72\ns_sub_u32 s76, s76, s72")
    a("v_mov_b32 v8, s70\nv_mov_b32 v9, s92\nv_mov_b32 v10, s90\nv_mov_b32 v11, s74\nv_mov_b32 v12, s76")
    a(f"v_mov_b32 v1, {0x1B40000 + slot * 32}")
    a("buffer_store_dwordx4 v[8:11], v1, s[96:99], 0 offen\nbuffer_store_dword v12, v1, s[96:99], 0 offen offset:16\ns_waitcnt vmcnt(0)")
    if slot == 2:
        a(f"v_lshlrev_b32 v2, 2, v0\nv_add_u32 v1, {0x1B40000}, v2\nbuffer_load_dword v3, v1, s[96:99], 0 offen sc1\ns_load_dwordx2 s[46:47], s[0:1], 80\ns_waitcnt vmcnt(0) lgkmcnt(0)")
        a("v_cmp_eq_u32 vcc, 0, v0\nv_readfirstlane_b32 s48, v3\nv_and_b32 v4, 7, v0\nv_cmp_eq_u32 vcc, 0, v4\nv_subrev_u32 v5, s48, v3\nv_cndmask_b32 v3, v3, v5, vcc")
        srd(a, 96, 46, 256)
        a("v_lshrrev_b32 v5, 3, v0\nv_mul_u32_u24 v5, 5, v5\nv_add_u32 v5, v5, v4\nv_lshlrev_b32 v5, 2, v5\nv_cmp_gt_u32 vcc, 5, v4\nv_cmp_gt_u32 s[46:47], 24, v0\ns_and_b64 vcc, vcc, s[46:47]")
        a("s_and_saveexec_b64 s[50:51], vcc\nbuffer_store_dword v3, v5, s[96:99], 0 offen\ns_waitcnt vmcnt(0)\ns_mov_b64 exec, s[50:51]")
        if cfg.get("spin"):
            a("s_mov_b32 s52, 0")
            a.label("L_spin")
            a(f"s_memrealtime s[54:55]\ns_waitcnt lgkmcnt(0)\ns_sub_u32 s54, s54, s48\ns_cmp_ge_u32 s54, {cfg['spin']}\ns_cbranch_scc1 {lab}")
            a("s_add_u32 s52, s52, 1\ns_cmp_lt_u32 s52, 100000\ns_cbranch_scc1 L_spin")
    a.label(lab)


def write_stamps(a, cfg, n, slot, wsreg=S_WSP):
    if cfg.get("stamp") == 2:
        return dbg_report(a, cfg, n, slot, wsreg)
    if not cfg.get("stamp"):
        return
    a("s_memtime s[90:91]\ns_memrealtime s[92:93]\ns_waitcnt lgkmcnt(0)")
    vals = [70, 92] + [74 + 2 * k for k in range(n)] + [90]
    for j, s in enumerate(vals):
        if j >= 2: a(f"s_sub_u32 s{s}, s{s}, s72")
        a(f"v_mov_b32 v{8 + j}, s{s}")
    a(f"s_lshl_b32 s46, s2, 2\ns_add_u32 s46, s46, s3\ns_lshl_b32 s46, s46, 5\ns_add_u32 s46, s46, {0x1B00000 + slot * 0x10000}\nv_mov_b32 v1, s46")
    a("v_cmp_eq_u32 vcc, 0, v0\ns_and_saveexec_b64 s[50:51], vcc")
    srd(a, 96, wsreg, 0x1C00000)
    a("buffer_store_dwordx4 v[8:11], v1, s[96:99], 0 offen\nbuffer_store_dwordx4 v[12:15], v1, s[96:99], 0 offen offset:16")
    a("s_mov_b64 exec, s[50:51]")


def gen_q(a, cfg):
    L = Loop(a, True, cfg)
    a(f"v_mul_u32_u24 v23, 6144, v23\nv_add_u32 v25, v25, v23\ns_lshl_b32 s48, s{S_IDX}, 7\nv_add_u32 v25, s48, v25")
    for c in range(3):
        a(f"v_add_u32 v{10 + c}, {c * 2048 - c * 1024}, v25")
    a("v_lshrrev_b32 v23, 2, v0\nv_and_b32 v23, 7, v23\nv_add_u32 v23, s49, v23\nv_mul_u32_u24 v23, 7168, v23")
    a("s_and_b32 s50, s3, 1\nv_lshrrev_b32 v24, 1, v0\nv_and_b32 v24, 1, v24\nv_xor_b32 v24, s50, v24\nv_lshlrev_b32 v24, 5, v24\nv_lshl_add_u32 v24, v26, 4, v24")
    a(f"s_lshl_b32 s48, s{S_IDX}, 6\ns_add_u32 s48, s48, {2560 + 4096 - 3072}\nv_add_u32 v24, v24, v23\nv_add_u32 v13, s48, v24")
    a(f"s_lshl_b32 s48, s{S_RB}, 8\ns_max_u32 s48, s48, 16\ns_sub_u32 s48, s48, 16\ns_lshl_b32 s50, s3, 2\ns_add_u32 s48, s48, s50")
    a("v_add_u32 v23, s48, v20\nv_lshlrev_b32 v23, 11, v23\ns_lshl_b32 s50, s3, 1\nv_add_u32 v24, s50, v22\nv_and_b32 v24, 7, v24\nv_xor_b32 v24, v24, v21\nv_lshl_add_u32 v1, v24, 4, v23")
    a(f"s_lshl_b32 s{S_M0X}, s3, 13\ns_add_u32 s{S_M0X}, s{S_M0X}, 2048\ns_lshl_b32 s{S_M0H}, s3, 9")
    a(f"s_mul_i32 s{S_M0W}, s3, 3584\ns_add_u32 s{S_M0W}, s{S_M0W}, {3 * XS_Q}")
    a("s_waitcnt lgkmcnt(0)")
    srd(a, SRD_X, 4, 0x400000)
    srd(a, SRD_W, 6, 0x600000)
    srd_biased(a, SRD_W2, 36, 0x700000)
    for g in L.dma_x(0) + L.dma_x(1) + L.dma_w(0): a.emit(g)
    srd(a, SRD_WS, S_WSP, WS_SIZE)
    read_bases(a, True)
    gate_loads(a)
    def zero():
        for i in range(208): a(f"v_mov_b32 v{L.ACC + i}, 0")
        for i in range(32): a(f"v_accvgpr_write_b32 a{128 + i}, 0")
    if cfg.get("codepf"): cfg["codepf"](a)
    L.run(zero)
    stamp(a, cfg, 1)
    gate_finish(a, 2)
    Q = lambda u: L.ACC + 8 * (u - 1)
    K = lambda u: L.ACC + 64 + 8 * u
    V = lambda n, u: L.ACC + 136 + 36 * n + 2 * u
    P = lambda u: Q(u) + 4
    C = lambda u: K(u) + 4
    U = range(1, 9)
    a("v_and_b32 v2, 15, v0\nv_lshrrev_b32 v3, 4, v0\nv_and_b32 v4, 1, v0\nv_lshl_add_u32 v5, v3, 2, v4\nv_add_u32 v6, 2, v5")
    a("v_cmp_eq_u32 s[50:51], 1, v4\nv_cmp_le_u32 s[52:53], v5, v2\nv_cmp_le_u32 s[54:55], v6, v2")
    a("v_mov_b32 v7, 0x0c0c0100\nv_mov_b32 v8, 0x01000c0c\nv_mov_b32 v9, 0x0c0c0302\nv_mov_b32 v10, 0x03020c0c\nv_mov_b32 v11, 0x0c0c0c0c")
    a("v_cndmask_b32 v7, v7, v8, s[50:51]\nv_cndmask_b32 v9, v9, v10, s[50:51]")
    a("v_cndmask_b32 v12, v7, v11, s[52:53]\nv_cndmask_b32 v13, v9, v11, s[54:55]\nv_cndmask_b32 v14, v11, v7, s[52:53]\nv_cndmask_b32 v15, v11, v9, s[54:55]")
    a(f"s_lshr_b32 s46, s3, 1\ns_or_b32 s46, s46, s{S_RB}\ns_cmp_eq_u32 s46, 0\ns_cselect_b64 s[56:57], -1, 0\nv_mov_b32 v16, 0xff800000")
    for base in [K(u) for u in range(9)] + [Q(u) for u in U]:
        for j in range(4): a(f"v_cvt_pk_bf16_f32 v{base + j}, v{base + 2 * j}, v{base + 2 * j + 1}")
    for u in U:
        a(mfma(P(u), vr(K(u - 1)), vr(Q(u)), "0"))
        a(mfma(C(u), vr(K(u)), vr(Q(u)), "0"))
    for n in range(2):
        b = L.ACC + 136 + 36 * n
        for j in range(18): a(f"v_cvt_pk_bf16_f32 v{b + j}, v{b + 2 * j}, v{b + 2 * j + 1}")
    sc = f2u(32 ** -0.5 * 1.4426950408889634)
    a(f"s_mov_b32 s46, {sc}")
    def each(fmt):
        for u in U:
            a(fmt.format(P0=P(u), P1=P(u) + 1, P2=P(u) + 2, P3=P(u) + 3, C0=C(u), C1=C(u) + 1, C2=C(u) + 2, C3=C(u) + 3))
    each("v_cndmask_b32 v{P0}, v{P0}, v{P1}, s[50:51]\nv_cndmask_b32 v{P2}, v{P2}, v{P3}, s[50:51]")
    a(f"v_cndmask_b32 v{P(1)}, v{P(1)}, v16, s[56:57]\nv_cndmask_b32 v{P(1) + 2}, v{P(1) + 2}, v16, s[56:57]")
    each("v_cndmask_b32 v{C0}, v{C0}, v{C1}, s[50:51]\nv_cndmask_b32 v{C2}, v{C2}, v{C3}, s[50:51]")
    each("v_cndmask_b32 v{P0}, v{P0}, v{C0}, s[52:53]\nv_cndmask_b32 v{P2}, v{P2}, v{C2}, s[54:55]")
    each("v_max_f32 v{P1}, v{P0}, v{P2}")
    def xreduce(op):
        each("v_mov_b32 v{P3}, v{P1}")
        each("v_permlane32_swap_b32 v{P1}, v{P3}")
        each(op + " v{P1}, v{P1}, v{P3}")
        each("v_mov_b32 v{P3}, v{P1}")
        each("v_permlane16_swap_b32 v{P1}, v{P3}")
        each(op + " v{P1}, v{P1}, v{P3}")
    xreduce("v_max_f32")
    each("v_sub_f32 v{P0}, v{P0}, v{P1}\nv_sub_f32 v{P2}, v{P2}, v{P1}")
    each("v_mul_f32 v{P0}, s46, v{P0}\nv_mul_f32 v{P2}, s46, v{P2}")
    each("v_exp_f32 v{P0}, v{P0}\nv_exp_f32 v{P2}, v{P2}")
    each("v_add_f32 v{P1}, v{P0}, v{P2}")
    xreduce("v_add_f32")
    each("v_rcp_f32 v{P1}, v{P1}")
    each("v_mul_f32 v{P0}, v{P0}, v{P1}\nv_mul_f32 v{P2}, v{P2}, v{P1}")
    each("v_cvt_pk_bf16_f32 v{C1}, v{P0}, v{P2}")
    each("v_perm_b32 v{P0}, v{C1}, v{C1}, v12\nv_perm_b32 v{P1}, v{C1}, v{C1}, v13\nv_perm_b32 v{P2}, v{C1}, v{C1}, v14\nv_perm_b32 v{P3}, v{C1}, v{C1}, v15")
    for u in U:
        a(mfma(C(u), vr(V(0, u - 1)), vr(P(u)), "0"))
        a(mfma(Q(u), vr(V(1, u - 1)), vr(P(u)), "0"))
    a("v_lshlrev_b32 v17, 4, v0")
    a(f"s_lshl_b32 s46, s{S_RB}, 3\ns_lshr_b32 s47, s3, 1\ns_lshl_b32 s47, s47, 2\ns_add_u32 s46, s46, s47\ns_mul_i32 s46, s46, {112 * 1024}")
    a(f"s_lshl_b32 s47, s{S_IDX}, 1\ns_and_b32 s48, s3, 1\ns_add_u32 s47, s47, s48\ns_add_u32 s49, s47, 80\ns_lshl_b32 s49, s49, 10\ns_add_u32 s46, s46, s49\ns_add_u32 s46, s46, {WS_Z1}")
    for tp in range(4):
        T = 18 + 8 * (tp % 3)
        for j in range(8): a(f"v_accvgpr_read_b32 v{T + j}, a{128 + 8 * tp + j}")
        for j in range(4): a(f"v_cvt_pk_bf16_f32 v{T + j}, v{T + 2 * j}, v{T + 2 * j + 1}")
        a(f"buffer_store_dwordx4 {vr(T)}, v17, {vr(SRD_WS, 4, 's')}, s46 offen")
        if tp < 3: a(f"s_add_u32 s46, s46, {112 * 1024}")
    a(f"s_lshl_b32 s46, s{S_RB}, 4\ns_lshr_b32 s48, s3, 1\ns_lshl_b32 s48, s48, 3\ns_add_u32 s46, s46, s48\ns_lshl_b32 s46, s46, 5\ns_add_u32 s46, s46, s47\ns_lshl_b32 s46, s46, 10\ns_add_u32 s46, s46, {WS_O}")
    for u in U:
        a(f"v_cvt_pk_bf16_f32 v{P(u)}, v{C(u)}, v{C(u) + 1}\nv_cvt_pk_bf16_f32 v{P(u) + 1}, v{C(u) + 2}, v{C(u) + 3}")
        a(f"v_cvt_pk_bf16_f32 v{P(u) + 2}, v{Q(u)}, v{Q(u) + 1}\nv_cvt_pk_bf16_f32 v{P(u) + 3}, v{Q(u) + 2}, v{Q(u) + 3}")
        a(f"buffer_store_dwordx4 {vr(P(u))}, v17, {vr(SRD_WS, 4, 's')}, s46 offen")
        if u < 8: a("s_add_u32 s46, s46, 32768")
    stamp(a, cfg, 2)
    write_stamps(a, cfg, 3, 0)
    a("s_endpgm")


def gen_z(a, cfg):
    a.label("L_k1_z")
    a.hist = []
    L = Loop(a, False, cfg)
    a(f"s_lshl_b32 s46, s{S_IDX}, 1\ns_add_u32 s52, s46, 28\ns_add_u32 s53, s46, 29\ns_mov_b32 s54, s{S_IDX}")
    a(f"s_add_u32 s55, s{S_IDX}, 40\ns_sub_u32 s56, s46, 12\ns_sub_u32 s57, s46, 11")
    a(f"s_cmp_lt_u32 s{S_IDX}, 12\ns_cselect_b32 s52, s52, s55\ns_cselect_b32 s53, s53, s56\ns_cselect_b32 s54, s54, s57")
    a("v_mul_u32_u24 v23, 7168, v23\nv_add_u32 v25, v25, v23")
    for c in range(3):
        a(f"s_lshl_b32 s46, s{52 + c}, 7\ns_add_u32 s46, s46, {4096 - c * 1024}\nv_add_u32 v{10 + c}, s46, v25")
    a(f"s_lshl_b32 s{S_M0X}, s3, 13\ns_mul_i32 s{S_M0W}, s3, 3072\ns_add_u32 s{S_M0W}, s{S_M0W}, {3 * XS_Z}")
    a("s_waitcnt lgkmcnt(0)")
    srd(a, SRD_X, 4, 0x400000)
    srd_biased(a, SRD_W, 36, 0x700000)
    for g in L.dma_x(0) + L.dma_x(1) + L.dma_w(0): a.emit(g)
    srd(a, SRD_WS, S_WSP, WS_SIZE)
    read_bases(a, False)
    gate_loads(a)
    a("s_mov_b32 s64, s52\ns_mov_b32 s65, s53\ns_mov_b32 s66, s54")
    def zero():
        for i in range(192): a(f"v_mov_b32 v{L.ACC + i}, 0")
    if cfg.get("codepf"): cfg["codepf"](a)
    L.run(zero)
    stamp(a, cfg, 1)
    Z = lambda n, u: L.ACC + 4 * (4 * n + u)
    a(f"s_mov_b32 s{S_C1}, {f2u(GELU_C1)}\ns_mov_b32 s{S_C1 + 1}, {f2u(GELU_C1)}\ns_mov_b32 s{S_ONE}, 1.0\ns_mov_b32 s{S_ONE + 1}, 1.0")
    a(f"v_mov_b32 v2, {f2u(GELU_C0)}\nv_mov_b32 v3, {f2u(GELU_C0)}\nv_lshlrev_b32 v1, 4, v0")
    SUM = lambda u: 4 + 4 * u
    tm = [20, 22, 24, 26, 28, 30, 32, 34]
    def gelu(ns, first):
        prs, st = [], []
        for n in ns:
            for h in range(2):
                for u in range(4):
                    prs.append(Z(n, u) + 2 * h)
                    st.append((SUM(u), SUM(u) + 2, first and n == ns[0] and h == 0))
        a.emit(gelu_pairs(prs, tm, S_C1, 2, S_ONE, st))
    isY = f"s_cmp_ge_u32 s{S_IDX}, 12"
    gelu([0, 1, 2, 3], True)
    a(f"{isY}\ns_cbranch_scc1 L_k1_g1")
    gelu([4, 5, 6, 7], False)
    a.label("L_k1_g1")
    a.fence(2)
    for u in range(4):
        a(f"v_add_f32 v{SUM(u)}, v{SUM(u)}, v{SUM(u) + 1}\nv_add_f32 v{SUM(u) + 2}, v{SUM(u) + 2}, v{SUM(u) + 3}")
    for u in range(4): a(f"v_permlane32_swap_b32 v{SUM(u)}, v{SUM(u) + 2}")
    for u in range(4): a(f"v_add_f32 v{SUM(u)}, v{SUM(u)}, v{SUM(u) + 2}")
    a(f"v_permlane16_swap_b32 v{SUM(0)}, v{SUM(1)}\nv_permlane16_swap_b32 v{SUM(2)}, v{SUM(3)}")
    a(f"v_add_f32 v20, v{SUM(0)}, v{SUM(1)}\nv_add_f32 v21, v{SUM(2)}, v{SUM(3)}")
    a(f"s_lshl_b32 s46, s{S_RB}, 2\ns_add_u32 s46, s46, s3\ns_lshl_b32 s46, s46, 13\ns_add_u32 s58, s46, {WS_ST}\ns_lshl_b32 s47, s{S_IDX}, 9\ns_add_u32 s47, s47, s58")
    a(f"v_lshlrev_b32 v22, 3, v0\nbuffer_store_dwordx2 v[20:21], v22, {vr(SRD_WS, 4, 's')}, s47 offen sc1")
    srd(a, SRD_AUX, S_DBG, 256)
    a(f"s_waitcnt vmcnt(0)\ns_barrier")
    a(f"s_lshl_b32 s46, s{S_RB}, 5\nv_mov_b32 v23, s46\nv_mov_b32 v24, 1\ns_cmp_lg_u32 s3, 0\ns_cbranch_scc1 L_k1_noadd")
    a(f"s_mov_b64 exec, 1\nbuffer_atomic_add v24, v23, {vr(SRD_AUX, 4, 's')}, 0 offen\ns_mov_b64 exec, -1")
    a.label("L_k1_noadd")
    stamp(a, cfg, 2)
    def z1(ns, sline):
        a(f"s_lshl_b32 s46, s{S_RB}, 3\ns_lshl_b32 s47, s3, 1\ns_add_u32 s46, s46, s47\ns_mul_i32 s46, s46, {112 * 1024}\ns_lshl_b32 s47, s{sline}, 12\ns_add_u32 s46, s46, s47")
        a(f"s_add_u32 s46, s46, {WS_Z1}\ns_add_u32 s47, s46, {112 * 1024}")
        for k, n in enumerate(ns):
            for tp in range(2):
                b = Z(n, 2 * tp)
                for j in range(4): a(f"v_cvt_pk_bf16_f32 v{b + j}, v{b + 2 * j}, v{b + 2 * j + 1}")
                a(f"buffer_store_dwordx4 {vr(b)}, v1, {vr(SRD_WS, 4, 's')}, s{46 + tp} offen offset:{1024 * k}")
    z1([8, 9, 10, 11], 66)
    a(f"s_cmp_lt_u32 s{S_IDX}, 12\ns_cbranch_scc1 L_k1_z1b")
    a.fence(2)
    z1([4, 5, 6, 7], 65)
    a.label("L_k1_z1b")
    a.fence(2)
    gate_finish(a, 26)
    a("s_mov_b32 s47, 0\ns_cmp_lg_u32 s3, 0\ns_cbranch_scc1 L_k1_polled")
    a.label("L_k1_poll")
    a(f"buffer_load_dword v24, v23, {vr(SRD_AUX, 4, 's')}, 0 offen sc1\ns_waitcnt vmcnt(0)\nv_readfirstlane_b32 s46, v24\ns_cmp_ge_u32 s46, 16\ns_cbranch_scc1 L_k1_polled\ns_sleep 1")
    a("s_add_u32 s47, s47, 1\ns_cmp_lt_u32 s47, 0x80000\ns_cbranch_scc1 L_k1_poll")
    a.label("L_k1_polled")
    a("s_barrier")
    stamp(a, cfg, 3)
    a("s_add_u32 s59, s58, 4096")
    for t in range(16):
        a(f"buffer_load_dwordx2 {vr(24 + 2 * t, 2)}, v22, {vr(SRD_WS, 4, 's')}, s{58 + t // 8} offen offset:{512 * (t % 8)} sc1")
    a("v_and_b32 v2, 3, v0\nv_bfe_u32 v3, v0, 2, 1\nv_lshl_or_b32 v2, v3, 3, v2\nv_bfe_u32 v3, v0, 3, 1\nv_lshl_or_b32 v2, v3, 2, v2\nv_bfe_u32 v3, v0, 4, 1\nv_lshl_or_b32 v2, v3, 4, v2")
    a("v_lshlrev_b32 v2, 5, v2\nv_lshrrev_b32 v3, 5, v0\nv_lshl_or_b32 v1, v3, 4, v2")
    a("s_waitcnt vmcnt(0)")
    for w in (8, 4, 2, 1):
        for j in range(w):
            a(f"v_pk_add_f32 {vr(24 + 2 * j, 2)}, {vr(24 + 2 * j, 2)}, {vr(24 + 2 * (j + w), 2)}")
    a("v_mov_b32 v26, v24\nv_mov_b32 v27, v25\nv_permlane32_swap_b32 v24, v26\nv_permlane32_swap_b32 v25, v27")
    inv = f2u(1.0 / 1792)
    a(f"v_mul_f32 v24, {inv}, v24\nv_mul_f32 v25, {inv}, v25\nv_mul_f32 v26, {inv}, v26\nv_mul_f32 v27, {inv}, v27")
    a(f"v_fma_f32 v26, -v24, v24, v26\nv_fma_f32 v27, -v25, v25, v27\nv_add_f32 v26, {f2u(1e-5)}, v26\nv_add_f32 v27, {f2u(1e-5)}, v27")
    a("v_rsq_f32 v4, v26\nv_rsq_f32 v8, v27\nv_mul_f32 v5, -v24, v4\nv_mul_f32 v9, -v25, v8")
    a("v_mov_b32 v6, v4\nv_mov_b32 v7, v5\nv_mov_b32 v10, v8\nv_mov_b32 v11, v9")
    a("v_permlane16_swap_b32 v4, v6\nv_permlane16_swap_b32 v5, v7\nv_permlane16_swap_b32 v8, v10\nv_permlane16_swap_b32 v9, v11")
    def z2(ns, sline):
        a(f"s_lshl_b32 s46, s{S_RB}, 3\ns_lshl_b32 s47, s3, 1\ns_add_u32 s46, s46, s47\ns_mul_i32 s46, s46, {112 * 1024}\ns_sub_u32 s47, s{sline}, 28\ns_lshl_b32 s47, s47, 12\ns_add_u32 s46, s46, s47")
        if WS_Z2N: a(f"s_add_u32 s46, s46, {WS_Z2N}")
        a(f"s_add_u32 s47, s46, {112 * 1024}")
        for k, n in enumerate(ns):
            for u in range(4):
                for h in range(2):
                    p = vr(Z(n, u) + 2 * h, 2)
                    s_ = vr(4 + 2 * u, 2)
                    a(f"v_pk_fma_f32 {p}, {p}, {s_}, {s_} op_sel:[0,0,1] op_sel_hi:[1,0,1]")
            for tp in range(2):
                b = Z(n, 2 * tp)
                for j in range(4): a(f"v_cvt_pk_bf16_f32 v{b + j}, v{b + 2 * j}, v{b + 2 * j + 1}")
            for tp in range(2):
                b = Z(n, 2 * tp)
                a(f"v_permlane16_swap_b32 v{b}, v{b + 2}\nv_permlane16_swap_b32 v{b + 1}, v{b + 3}")
            for tp in range(2):
                a(f"buffer_store_dwordx4 {vr(Z(n, 2 * tp))}, v1, {vr(SRD_WS, 4, 's')}, s{46 + tp} offen offset:{1024 * k}")
    z2([0, 1, 2, 3], 64)
    a(f"{isY}\ns_cbranch_scc1 L_k1_z2b")
    z2([4, 5, 6, 7], 65)
    a.label("L_k1_z2b")
    a.fence(2)
    write_stamps(a, cfg, 4, 0)
    a.label("L_k1_end")
    a("s_endpgm")


def gen_k1(cfg):
    a = Asm()
    common_prologue(a, cfg)
    gen_q(a, cfg)
    gen_z(a, cfg)
    return head("k1_kernel") + a.text() + "L_k1_codeend:\n", desc("k1_kernel", 512, 256)
```
